```python
import torch

def _softmax(x, axis=-1):
    return torch.softmax(x, dim=axis)

def _gelu(x):
    return torch.nn.functional.gelu(x, approximate='tanh')

def _silu(x):
    return torch.nn.functional.silu(x)

def _sigmoid(x):
    return torch.sigmoid(x)

def _layernorm(x, axis=-1, eps=1e-05):
    m = x.mean(dim=axis, keepdim=True)
    v = x.var(dim=axis, keepdim=True, unbiased=False)
    return (x - m) / torch.sqrt(v + eps)

def _scatter_add(tgt, idx, src, axis=0):
    return tgt.clone().index_add_(axis, idx, src)

def _segment_sum(src, seg, n):
    out = torch.zeros((n,) + src.shape[1:], dtype=src.dtype)
    return out.index_add_(0, seg, src)

def _pad(x, pw):
    flat = tuple((v for pair in reversed(pw) for v in pair))
    return torch.nn.functional.pad(x, flat)
kernel_name = 'gated_mix__linear_attn_block__memory_aug_recurrent_mem_tr__prompt'

def setup_inputs():

    _w = lambda a: (lambda t: t.to(torch.bfloat16) if t.is_floating_point() else t)(torch.as_tensor(a))

    def _A_setup():
        B, S, D = (1, 2048, 448)
        return {'x': _w((lambda *s: torch.randn(*s, dtype=torch.bfloat16) * 0.05)(B, S, D)), 'wqkv': _w((lambda *s: torch.randn(*s, dtype=torch.bfloat16) * 1.6)(D, 3 * D)), 'wo': _w((lambda *s: torch.randn(*s, dtype=torch.bfloat16) * 0.1)(D, D))}
    _A_in = _A_setup()

    def _B_setup():
        B, S, Dm = (1, 2048, 448)
        H, Dh = (16, 256)
        M, seg = (8, 32)
        seg = min(seg, S)
        S = S // seg * seg
        return {'x': _w((lambda *s: torch.randn(*s, dtype=torch.bfloat16) * 0.05)(B, S, Dm)), 'mem0': _w((lambda *s: torch.randn(*s, dtype=torch.bfloat16) * 0.8)(B, M, Dm)), 'Wq': _w((lambda *s: torch.randn(*s, dtype=torch.bfloat16) * 3.2)(Dm, H, Dh) * Dm ** (-0.5)), 'Wk': _w((lambda *s: torch.randn(*s, dtype=torch.bfloat16) * 3.2)(Dm, H, Dh) * Dm ** (-0.5)), 'Wv': _w((lambda *s: torch.randn(*s, dtype=torch.bfloat16) * 0.8)(Dm, H, Dh) * Dm ** (-0.5)), 'Wo': _w((lambda *s: torch.randn(*s, dtype=torch.bfloat16) * 0.8)(H, Dh, Dm) * (H * Dh) ** (-0.5)), 'seg_len': seg}
    _B_in = _B_setup()
    return {'A_x': _A_in['x'], 'A_wqkv': _A_in['wqkv'], 'A_wo': _A_in['wo'], 'B_x': _B_in['x'], 'B_mem0': _B_in['mem0'], 'B_Wq': _B_in['Wq'], 'B_Wk': _B_in['Wk'], 'B_Wv': _B_in['Wv'], 'B_Wo': _B_in['Wo'], 'B_seg_len': _B_in['seg_len'], 'gate_w': _w((lambda *s: torch.randn(*s, dtype=torch.bfloat16) * 0.05)(448) * 16.0)}

def reference(A_x, A_wqkv, A_wo, B_x, B_mem0, B_Wq, B_Wk, B_Wv, B_Wo, B_seg_len, gate_w):

    def _A_ref(x, wqkv, wo):
        B, S, D = x.shape
        H = 16
        Dh = D // H
        qkv = (lambda x, *d: x.permute(*d))((x @ wqkv).reshape(B, S, 3, H, Dh), 2, 0, 3, 1, 4)
        q, k, v = (qkv[0], qkv[1], qkv[2])
        phi = lambda t: torch.where(t > 0, t + 1, torch.exp(t)) + 1e-06
        pq, pk = (phi(q), phi(k))
        kv = torch.einsum('bhsd,bhse->bhde', pk, v)
        z = torch.einsum('bhsd->bhd', pk)
        num = torch.einsum('bhqd,bhde->bhqe', pq, kv)
        den = torch.einsum('bhqd,bhd->bhq', pq, z)[..., None] + 1e-06
        o = num / den
        return (lambda x, *d: x.permute(*d))(o, 0, 2, 1, 3).reshape(B, S, D) @ wo

    def _B_ref(x, mem0, Wq, Wk, Wv, Wo, seg_len):
        B, S, Dm = x.shape
        H, Dh = (Wq.shape[1], Wq.shape[2])
        M = mem0.shape[1]
        scale = Dh ** (-0.5)
        n_seg = S // seg_len
        L = M + seg_len
        idx = torch.arange(L)
        mask = (idx[:, None] < M) | (idx[:, None] >= idx[None, :])
        mem = mem0
        outs = []
        for s in range(n_seg):
            xs = x[:, s * seg_len:(s + 1) * seg_len, :].clone()
            h = torch.concatenate([mem, xs], axis=1)
            q = torch.einsum('btd,dhe->bhte', h, Wq)
            k = torch.einsum('btd,dhe->bhte', h, Wk)
            v = torch.einsum('btd,dhe->bhte', h, Wv)
            scores = torch.einsum('bhqe,bhke->bhqk', q, k) * scale
            scores = torch.where(mask[None, None], scores, -1000000000.0)
            p = _softmax(scores, axis=-1)
            o = torch.einsum('bhqk,bhke->bhqe', p, v)
            o = torch.einsum('bhte,hed->btd', o, Wo)
            mem = o[:, :M, :].clone()
            outs.append(o[:, M:, :])
        return torch.concatenate(outs, axis=1)
    x = A_x
    g = _sigmoid((x * gate_w).sum(-1, keepdims=True))
    a = _A_ref(x, A_wqkv, A_wo)
    b = _B_ref(x, B_mem0, B_Wq, B_Wk, B_Wv, B_Wo, B_seg_len)
    return g * a + (1 - g) * b
```

```python
import re

MFMA_STATES = 1
TRANS = ("v_exp_f32", "v_log_f32", "v_rcp_f32", "v_rsq_f32", "v_sqrt_f32", "v_sin_f32", "v_cos_f32")
_reg = re.compile(r"^(-|abs\()?([vas])(?:\[(\d+):(\d+)\]|(\d+))\)?$")

def regs(tok):
    tok = tok.strip()
    if tok in ("vcc", "exec"):
        return {tok + "_lo", tok + "_hi"}
    if tok in ("vcc_lo", "vcc_hi", "exec_lo", "exec_hi", "m0"):
        return {tok}
    m = _reg.match(tok)
    if not m:
        return set()
    k = m.group(2)
    if m.group(3) is not None:
        return {f"{k}{i}" for i in range(int(m.group(3)), int(m.group(4)) + 1)}
    return {f"{k}{m.group(5)}"}

class Ins:
    __slots__ = ("text", "op", "ops", "mods", "w", "r", "cls", "label", "target", "srcc", "ab", "passes", "dpp", "stdata", "states")
    def __init__(self, text):
        self.text = text
        self.label = None; self.target = None
        self.w = set(); self.r = set(); self.srcc = set(); self.ab = set(); self.stdata = set()
        self.passes = 0; self.dpp = False; self.cls = "other"; self.states = 1
        t = text.split(";")[0].strip()
        if t.endswith(":"):
            self.label = t[:-1]; self.cls = "label"; self.op = ""; self.states = 0; return
        if t.startswith(".") or not t:
            self.cls = "dir"; self.op = ""; self.states = 0; return
        parts = t.split(None, 1)
        op = parts[0]; self.op = op
        rest = parts[1] if len(parts) > 1 else ""
        toks = [x.strip() for x in rest.split(",")]
        ops = []; mods = []
        for i, x in enumerate(toks):
            sub = x.split()
            if not sub: continue
            ops.append(sub[0]); mods += sub[1:]
        self.ops = ops; self.mods = mods
        R = [regs(x) for x in ops]
        allr = lambda lst: set().union(*lst) if lst else set()
        if op.startswith("v_mfma") or op.startswith("v_smfmac"):
            self.cls = "mfma"; self.passes = 8 if "32x32" in op else 4
            self.states = MFMA_STATES
            self.w = R[0]; self.ab = R[1] | R[2]
            if op.startswith("v_smfmac"):
                self.srcc = R[0]; self.ab |= R[3]
            else:
                self.srcc = R[3]
            self.r = self.ab | self.srcc
        elif op.startswith("v_"):
            self.cls = "valu"
            self.dpp = ("_dpp" in op) or any(m.startswith(("row_", "quad_perm", "wave_")) for m in mods)
            base = op.replace("_e32", "").replace("_e64", "").replace("_dpp", "").replace("_sdwa", "")
            if base.startswith("v_cmp"):
                self.w = R[0]; self.r = allr(R[1:])
                if base.startswith("v_cmpx"): self.w |= regs("exec")
            elif base in ("v_swap_b32", "v_permlane32_swap_b32", "v_permlane16_swap_b32"):
                self.w = R[0] | R[1]; self.r = R[0] | R[1]
            elif base in ("v_add_co_u32", "v_sub_co_u32", "v_addc_co_u32", "v_subb_co_u32"):
                self.w = R[0] | R[1]; self.r = allr(R[2:])
            else:
                self.w = R[0]; self.r = allr(R[1:])
                if base in ("v_fmac_f32", "v_dot2c_f32_bf16", "v_pk_fmac_f16", "v_writelane_b32") or self.dpp:
                    self.r |= R[0]
        elif op.startswith(("buffer_", "global_")):
            self.cls = "vmem"
            if op in ("buffer_wbl2", "buffer_inv"):
                pass
            elif "load" in op:
                if "lds" in mods or "_lds_" in op:
                    self.r = allr(R) | {"m0"}; self.cls = "vmem_lds"
                else:
                    self.w = R[0]; self.r = allr(R[1:])
            elif "atomic" in op:
                self.r = allr(R)
                if "sc0" in mods: self.w = R[0] if op.startswith("buffer") else R[0]
            else:
                self.r = allr(R)
                if "x3" in op or "x4" in op:
                    self.stdata = R[0] if op.startswith("buffer") else R[1]
        elif op.startswith("ds_"):
            self.cls = "ds"
            if op.startswith(("ds_read", "ds_bpermute", "ds_permute", "ds_swizzle")):
                self.w = R[0]; self.r = allr(R[1:])
            else:
                self.r = allr(R)
        elif op.startswith("s_"):
            self.cls = "salu"
            if op == "s_nop":
                self.states = int(ops[0], 0) + 1
            elif op in ("s_branch",) or op.startswith("s_cbranch"):
                self.target = ops[0]
                if "vcc" in op: self.r = regs("vcc")
                if "exec" in op: self.r = regs("exec")
            elif op.startswith(("s_cmp", "s_bitcmp", "s_waitcnt", "s_barrier", "s_endpgm", "s_sleep", "s_setprio")):
                self.r = allr(R)
            elif op.startswith("s_") and "saveexec" in op:
                self.w = R[0] | regs("exec"); self.r = allr(R[1:]) | regs("exec")
            else:
                self.w = R[0] if R else set(); self.r = allr(R[1:])

def vset(s): return {x for x in s if x[0] in "va" and x[1:].isdigit()}
def sset(s): return {x for x in s if not (x[0] in "va" and x[1:].isdigit())}

def need(p, c):
    n = 0
    if p.cls == "valu":
        pw_v = vset(p.w); pw_s = sset(p.w)
        if c.cls == "mfma" and pw_v & c.r: n = max(n, 2)
        if c.cls == "valu":
            cb = c.op
            if c.dpp and pw_v & c.r: n = max(n, 2)
            if "permlane" in cb and pw_v & c.r: n = max(n, 2)
            if ("readlane" in cb or "readfirstlane" in cb) and pw_v & c.r: n = max(n, 1)
            if pw_s & c.r: n = max(n, 4 if ("readlane" in cb or "writelane" in cb) else 2)
            if p.op.replace("_e32", "").replace("_e64", "") in TRANS and pw_v & c.r: n = max(n, 1)
            if ("exec_lo" in pw_s) and (c.dpp): n = max(n, 5)
            if ("exec_lo" in pw_s) and ("permlane" in cb or "readlane" in cb or "readfirstlane" in cb): n = max(n, 4)
        if c.cls == "mfma" and "exec_lo" in pw_s: n = max(n, 4)
        if c.cls in ("vmem", "vmem_lds") and pw_s & c.r: n = max(n, 5)
        if c.cls == "salu" and pw_s & c.r: n = max(n, 1)
    if p.cls == "mfma":
        k = {4: (0, 6, 8, 8, 3), 8: (0, 10, 12, 12, 7)}[p.passes]
        if c.cls == "mfma":
            if p.w & c.ab: n = max(n, k[2])
            if p.w & c.srcc:
                same = (p.w == c.srcc) and p.passes == c.passes
                n = max(n, k[0] if same else k[1])
            elif p.w & c.w: n = max(n, k[1])
        elif c.cls in ("valu", "vmem", "vmem_lds", "ds"):
            if p.w & (c.r | c.w): n = max(n, k[3])
            if c.cls == "valu" and p.srcc & c.w: n = max(n, k[4])
    if p.cls == "vmem" and p.stdata:
        if c.cls == "valu" and p.stdata & c.w: n = max(n, 2)
        elif p.stdata & c.w: n = max(n, 1)
    if p.cls == "salu" and "m0" in p.w and c.cls == "vmem_lds": n = max(n, 1)
    return n

class Asm:
    def __init__(self):
        self.lines = []
    def __call__(self, text):
        for l in text.split("\n"):
            l = l.strip()
            if l: self.lines.append(l)
    def finish(self, maxback=12):
        ins = [Ins(l) for l in self.lines]
        labels = {x.label: i for i, x in enumerate(ins) if x.label}
        preds_from = {}
        for i, x in enumerate(ins):
            if x.target is not None and x.target in labels:
                preds_from.setdefault(labels[x.target], []).append(i)
        pad = [0] * len(ins)
        def preds(i):
            out = []
            if i > 0:
                p = ins[i - 1]
                if not (p.op in ("s_branch", "s_endpgm")): out.append(i - 1)
            out += preds_from.get(i, [])
            return out
        changed = True; rounds = 0
        while changed:
            changed = False; rounds += 1
            for i, c in enumerate(ins):
                if c.cls in ("label", "dir"): continue
                worst = 0
                stack = [(j, pad[i]) for j in preds(i)]
                seen = {}
                while stack:
                    j, d = stack.pop()
                    if d >= maxback: continue
                    if seen.get(j, 99) <= d: continue
                    seen[j] = d
                    p = ins[j]
                    if p.cls not in ("label", "dir"):
                        nn = need(p, c) - d
                        if nn > worst: worst = nn
                    d2 = d + p.states + pad[j]
                    for q in preds(j): stack.append((q, d2))
                if worst > 0:
                    pad[i] += worst; changed = True
            assert rounds < 10
        out = []; self.nnops = 0
        for i, c in enumerate(ins):
            k = pad[i]
            while k > 0:
                t = min(k, 16); out.append(f"    s_nop {t-1}"); k -= t; self.nnops += 1
            out.append(c.text if c.cls in ("label", "dir") else "    " + c.text)
        return "\n".join(out) + "\n"
```

```python
import sys
from gen_common import *
import k1
NOTES = """;
"""
def build(kernels, LIST=True):
    head = open("gated_mix__linear_attn_block__memory_aug_recurrent_mem_tr__prompt.s.ref").read().split("\n")
    head = [l for l in head if l.startswith(";") and "@launch" not in l and "Override" not in l and "grid=ceil" not in l]
    out = "\n".join(head) + "\n"
    for name, g, b, lds, _ in kernels:
        out += f"; @launch {'kernel=' + name + ' ' if LIST else ''}grid=({g},1,1) block=({b},1,1) lds={lds}\n"
    out += NOTES
    out += '.amdgcn_target "amdgcn-amd-amdhsa--gfx950"\n.text\n'
    done = set()
    for name, g, b, lds, text in kernels:
        if name in done: continue
        done.add(name); out += text
    return out
if __name__ == "__main__":
    t = build([("prep_kernel", 256, 256, k1.K1_LDS, k1.gen_k1("prep_kernel", True))])
    open(sys.argv[1], "w").write(t)
```

```python
from asmlib import Asm
from layout import *
KA = dict(x=0, wqkv=8, wo=16, bx=24, mem0=32, Wq=40, Wk=48, Wv=56, Wo=64, seg=72, gw=80, out=88, dbg=96, ws=104)
SZ = dict(x=2048*448*2, wqkv=448*1344*2, wo=448*448*2, mem0=8*448*2, Wq=448*4096*2, Wk=448*4096*2, Wv=448*4096*2,
          Wo=448*4096*2, gw=448*2, out=2048*448*2, dbg=256, ws=WS_BYTES)
def vr(b, n=1): return f"v{b}" if n == 1 else f"v[{b}:{b+n-1}]"
def ar(b, n=1): return f"a{b}" if n == 1 else f"a[{b}:{b+n-1}]"
def sr(b, n=1): return f"s{b}" if n == 1 else f"s[{b}:{b+n-1}]"
def srd_load(a, name, d):
    a(f"s_load_dwordx2 s[{d}:{d+1}], s[0:1], {KA[name]}")
def srd_fin(a, name, d):
    a(f"s_mov_b32 s{d+2}, {hex(SZ[name])}\ns_mov_b32 s{d+3}, 0x20000")
def header(a, name):
    a(f".globl {name}\n.p2align 8\n.type {name},@function\n{name}:")
def kd(name, vgpr, accum, sgpr=102):
    return f""".section .rodata,"a"
.p2align 6
.amdhsa_kernel {name}
  .amdhsa_next_free_vgpr {vgpr}
  .amdhsa_next_free_sgpr {sgpr}
  .amdhsa_accum_offset {accum}
  .amdhsa_group_segment_fixed_size 0
  .amdhsa_kernarg_size 112
  .amdhsa_user_sgpr_count 2
  .amdhsa_user_sgpr_kernarg_segment_ptr 1
  .amdhsa_system_sgpr_workgroup_id_x 1
.end_amdhsa_kernel
.text
"""
```

```python
from gen_common import *

class VM:
    def __init__(self, a): self.a = a; self.n = 0; self.tags = {}
    def op(self, text, tag=None):
        self.a(text); self.n += 1
        if tag is not None: self.tags[tag] = self.n
    def wait(self, tag):
        k = min(self.n - self.tags[tag], 63)
        self.a(f"s_waitcnt vmcnt({k})")

LOG2E = 1.4426950408889634
import struct
def f32(x): return hex(struct.unpack("<I", struct.pack("<f", x))[0])

def gen_k1(name):
    a = Asm(); header(a, name)
    WS, X, SA, SB, M0 = 4, 8, 12, 16, 20
    a("s_cmp_ge_u32 s2, 256\ns_cbranch_scc1 K1_end")
    srd_load(a, "ws", WS); srd_load(a, "x", X); srd_load(a, "mem0", M0)
    a("""s_and_b32 s24, s2, 7
s_lshr_b32 s25, s2, 3
v_lshrrev_b32 v1, 6, v0
v_and_b32 v2, 63, v0
v_readfirstlane_b32 s26, v1
v_lshlrev_b32 v3, 4, v0
v_lshlrev_b32 v4, 4, v2
v_lshrrev_b32 v5, 4, v2
v_and_b32 v6, 15, v2""")
    srd_fin(a, "ws", WS); srd_fin(a, "x", X); srd_fin(a, "mem0", M0)
    a("s_waitcnt lgkmcnt(0)")
    a(f"""s_cmp_ge_u32 s2, 208
s_cbranch_scc1 K1_nofill
s_cmp_eq_u32 s2, 0
s_cbranch_scc1 K1_filled
s_cmp_eq_u32 s2, 64
s_cbranch_scc1 K1_filled
v_mov_b32 v8, -1
v_mov_b32 v9, -1
v_mov_b32 v10, -1
v_mov_b32 v11, -1
s_lshl_b32 s27, s2, 13
s_add_u32 s27, s27, {hex(OFF_MF)}
s_add_u32 s28, s27, 4096
buffer_store_dwordx4 v[8:11], v3, s[{WS}:{WS+3}], s27 offen
buffer_store_dwordx4 v[8:11], v3, s[{WS}:{WS+3}], s28 offen
s_branch K1_filled
K1_nofill:
s_cmp_ge_u32 s2, 232
s_cbranch_scc1 K1_nozero
v_mov_b32 v8, 0
v_mov_b32 v9, 0
v_mov_b32 v10, 0
v_mov_b32 v11, 0
s_sub_u32 s27, s2, 208
s_lshl_b32 s27, s27, 12
s_add_u32 s27, s27, {hex(OFF_FL)}
buffer_store_dwordx4 v[8:11], v3, s[{WS}:{WS+3}], s27 offen
s_branch K1_filled
K1_nozero:
s_cmp_ge_u32 s2, 234
s_cbranch_scc1 K1_filled
v_and_b32 v8, 7, v0
v_mul_u32_u24 v8, 896, v8
v_lshrrev_b32 v9, 3, v0
v_lshl_add_u32 v8, v9, 4, v8
buffer_load_dwordx4 v[12:15], v8, s[{M0}:{M0+3}], 0 offen
buffer_load_dwordx4 v[16:19], v8, s[{M0}:{M0+3}], 0 offen offset:512
s_sub_u32 s27, s2, 232
s_mul_i32 s27, s27, {hex(OFF_MX-OFF_MF)}
s_add_u32 s27, s27, {hex(OFF_MF)}
s_add_u32 s28, s27, 4096
s_waitcnt vmcnt(0)
buffer_store_dwordx4 v[12:15], v3, s[{WS}:{WS+3}], s27 offen
buffer_store_dwordx4 v[16:19], v3, s[{WS}:{WS+3}], s28 offen
K1_filled:""")
    a("""v_lshrrev_b32 v8, 2, v6
v_lshlrev_b32 v8, 3, v8
v_and_b32 v9, 3, v6
v_add_u32 v8, v8, v9
v_mul_u32_u24 v8, 896, v8
v_lshrrev_b32 v9, 1, v5
v_lshl_add_u32 v8, v9, 5, v8
v_and_b32 v9, 1, v5
v_lshl_add_u32 v20, v9, 3, v8
v_lshl_add_u32 v19, v9, 3, v20
s_lshr_b32 s27, s2, 2
s_lshl_b32 s27, s27, 5
s_bfe_u32 s28, s2, 0x10001
s_lshl_b32 s28, s28, 2
s_add_u32 s27, s27, s28
s_mul_i32 s27, s27, 896
s_and_b32 s28, s2, 1
s_mul_i32 s28, s28, 7
s_add_u32 s29, s28, s26
s_add_u32 s30, s26, 4
s_min_u32 s30, s30, 6
s_add_u32 s30, s28, s30
s_lshl_b32 s31, s29, 6
s_add_u32 s31, s31, s27
s_lshl_b32 s32, s30, 6
s_add_u32 s32, s32, s27
s_lshr_b32 s33, s2, 1
s_mul_i32 s33, s33, 14
s_add_u32 s29, s29, s33
s_add_u32 s30, s30, s33
s_lshl_b32 s29, s29, 10
s_lshl_b32 s30, s30, 10""")
    a(f"s_add_u32 s62, s29, {hex(OFF_XN)}\ns_add_u32 s63, s30, {hex(OFF_XN)}")
    a(f"s_add_u32 s29, s29, {hex(OFF_XP)}\ns_add_u32 s30, s30, {hex(OFF_XP)}")
    def xp_loads(vm):
        vm.op(f"buffer_load_dwordx4 v[48:51], v19, s[{X}:{X+3}], s31 offen")
        vm.op(f"buffer_load_dwordx4 v[52:55], v19, s[{X}:{X+3}], s32 offen")
        vm.op(f"buffer_load_dwordx2 v[24:25], v20, s[{X}:{X+3}], s31 offen")
        vm.op(f"buffer_load_dwordx2 v[26:27], v20, s[{X}:{X+3}], s31 offen offset:16")
        vm.op(f"buffer_load_dwordx2 v[28:29], v20, s[{X}:{X+3}], s32 offen")
        vm.op(f"buffer_load_dwordx2 v[30:31], v20, s[{X}:{X+3}], s32 offen offset:16", "xp")
    def xp_store(vm):
        vm.wait("xp")
        a("v_swap_b32 v25, v26\nv_swap_b32 v29, v30")
        vm.op(f"buffer_store_dwordx4 v[24:27], v4, s[{WS}:{WS+3}], s29 offen")
        vm.op(f"buffer_store_dwordx4 v[28:31], v4, s[{WS}:{WS+3}], s30 offen")
        vm.op(f"buffer_store_dwordx4 v[48:51], v4, s[{WS}:{WS+3}], s62 offen")
        vm.op(f"buffer_store_dwordx4 v[52:55], v4, s[{WS}:{WS+3}], s63 offen")
    a("s_cmp_ge_u32 s25, 28\ns_cbranch_scc1 K1_misc")
    a("""s_mul_i32 s34, s25, 37
s_lshr_b32 s34, s34, 8
s_mul_i32 s35, s34, 7
s_sub_u32 s35, s25, s35
s_lshl_b32 s34, s34, 3
s_add_u32 s34, s34, s24
s_and_b32 s36, s34, 15""")
    a("""v_lshrrev_b32 v8, 3, v6
v_lshlrev_b32 v8, 4, v8
v_bfe_u32 v9, v6, 1, 1
v_lshl_add_u32 v8, v9, 3, v8
v_bfe_u32 v9, v6, 2, 1
v_lshl_add_u32 v8, v9, 2, v8
v_and_b32 v9, 1, v6
v_add_u32 v8, v8, v9
v_lshlrev_b32 v8, 13, v8
v_lshl_add_u32 v21, v5, 4, v8
s_lshl_b32 s37, s36, 9""")
    for i in range(4):
        a(f"""s_add_u32 s38, s26, {4*i}
s_min_u32 s38, s38, 13
s_lshl_b32 s{40+2*i}, s38, 18
s_add_u32 s{40+2*i}, s{40+2*i}, s37
s_add_u32 s{41+2*i}, s{40+2*i}, 16384""")
    AF = [("a", 128), ("a", 192), ("v", 64), ("v", 128)]
    def afrag(i, tt, es):
        k, b = AF[i]; b += (tt*8+es)*4
        return f"{k}[{b}:{b+3}]"
    def a_loads(vm, i):
        for tt in range(2):
            for es in range(8):
                vm.op(f"buffer_load_dwordx4 {afrag(i,tt,es)}, v21, s[{SA}:{SA+3}], s{40+2*i+tt} offen offset:{es*64}", ("A", i) if (tt, es) == (1, 7) else None)
    def compute(vm, scale, lab):
        for i in range(4):
            if i == 3:
                a(f"s_cmp_ge_u32 s26, 2\ns_cbranch_scc1 K1_end")
            vm.wait(("A", i))
            acc = 192 + 32*(i & 1)
            for es in range(8):
                for tt in range(2):
                    for t in range(4):
                        d = acc + (tt*4+t)*4
                        c = "0" if es == 0 else f"v[{d}:{d+3}]"
                        a(f"v_mfma_f32_16x16x32_bf16 v[{d}:{d+3}], {afrag(i,tt,es)}, a[{(t*8+es)*4}:{(t*8+es)*4+3}], {c}")
            a(f"s_add_u32 s50, s26, {4*i}\ns_lshl_b32 s50, s50, 10\ns_add_u32 s50, s50, s39")
            for t in range(4):
                o = 32 + 4*t
                for tt in range(2):
                    d = acc + (tt*4+t)*4
                    if scale:
                        a(f"v_pk_mul_f32 v[{d}:{d+1}], v[{d}:{d+1}], s[52:53]\nv_pk_mul_f32 v[{d+2}:{d+3}], v[{d+2}:{d+3}], s[52:53]")
                    a(f"v_cvt_pk_bf16_f32 v{o+2*tt}, v{d}, v{d+1}\nv_cvt_pk_bf16_f32 v{o+2*tt+1}, v{d+2}, v{d+3}")
                vm.op(f"buffer_store_dwordx4 v[{o}:{o+3}], v4, s[{WS}:{WS+3}], s50 offen")
                if t < 3: a(f"s_add_u32 s50, s50, {14*1024}")
        a("s_endpgm")
    a(f"""s_mul_i32 s39, s34, 28
s_lshl_b32 s38, s35, 2
s_add_u32 s39, s39, s38
s_mul_i32 s39, s39, {14*1024}""")
    assert OFF_WA == 0 and OFF_WB == 16*WSZ
    a("s_cmp_ge_u32 s34, 16\ns_cbranch_scc1 K1_bmat")
    srd_load(a, "Wq", SA); srd_load(a, "Wk", SB); srd_fin(a, "Wq", SA); srd_fin(a, "Wk", SB)
    a(f"""v_lshrrev_b32 v8, 2, v6
v_lshlrev_b32 v8, 3, v8
v_and_b32 v9, 3, v6
v_add_u32 v8, v8, v9
v_lshlrev_b32 v8, 13, v8
v_lshl_add_u32 v22, v5, 4, v8
s_lshl_b32 s54, s35, 19
s_add_u32 s54, s54, s37
s_add_u32 s55, s54, {4*8192}
s_add_u32 s56, s54, {32*8192}
s_add_u32 s57, s54, {36*8192}
s_mov_b32 s52, {f32(LOG2E/16)}
s_mov_b32 s53, {f32(LOG2E/16)}
s_waitcnt lgkmcnt(0)""")
    vm = VM(a); xp_loads(vm)
    for t in range(4):
        for es in range(8):
            b = (t*8+es)*4
            vm.op(f"buffer_load_dwordx4 a[{b}:{b+3}], v22, s[{SB}:{SB+3}], s{54+t} offen offset:{es*64}")
    a_loads(vm, 0); xp_store(vm)
    for i in range(1, 4): a_loads(vm, i)
    compute(vm, True, "a")
    a("K1_bmat:")
    srd_load(a, "Wv", SA); srd_load(a, "Wo", SB); srd_fin(a, "Wv", SA); srd_fin(a, "Wo", SB)
    RS = 144
    a(f"""v_lshrrev_b32 v8, 3, v0
v_and_b32 v9, 7, v0
v_mul_u32_u24 v22, 896, v8
v_lshl_add_u32 v22, v9, 4, v22
v_mul_u32_u24 v23, {RS}, v8
v_lshl_add_u32 v23, v9, 4, v23
s_mul_i32 s54, s36, {256*896}
s_lshl_b32 s55, s35, 7
s_add_u32 s54, s54, s55
s_waitcnt lgkmcnt(0)""")
    vm = VM(a); xp_loads(vm)
    for j in range(8):
        vm.op(f"buffer_load_dwordx4 v[{192+4*j}:{195+4*j}], v22, s[{SB}:{SB+3}], s54 offen", ("B", j))
        if j < 7: a(f"s_add_u32 s54, s54, {32*896}")
    a_loads(vm, 0); xp_store(vm)
    for i in range(1, 3): a_loads(vm, i)
    for j in range(8):
        vm.wait(("B", j))
        a(f"ds_write_b128 v23, v[{192+4*j}:{195+4*j}] offset:{j*32*RS}")
    a_loads(vm, 3)
    a(f"""v_lshrrev_b32 v8, 2, v6
v_lshl_add_u32 v8, v5, 3, v8
v_mul_u32_u24 v8, {RS}, v8
v_and_b32 v9, 3, v6
v_lshl_add_u32 v23, v9, 4, v8
s_waitcnt lgkmcnt(0)
s_barrier""")
    for t in range(4):
        for es in range(8):
            b = (t*8+es)*4
            for hh in range(2):
                a(f"ds_read_b64_tr_b16 a[{b+2*hh}:{b+2*hh+1}], v23 offset:{(32*es+4*hh)*RS + (32*(t>>1)+4*(t&1))*2}")
        a("s_waitcnt lgkmcnt(0)")
    compute(vm, False, "b")
    a("K1_misc:")
    a("""s_sub_u32 s34, s25, 28
s_lshl_b32 s34, s34, 3
s_add_u32 s34, s34, s24""")
    a("""v_lshrrev_b32 v8, 2, v6
v_lshl_add_u32 v40, v5, 3, v8
v_and_b32 v41, 3, v6
s_cmp_ge_u32 s34, 28
s_cbranch_scc1 K1_wo""")
    srd_load(a, "wqkv", SB); srd_fin(a, "wqkv", SB)
    RL = 1360
    a(f"""s_lshr_b32 s35, s34, 1
s_and_b32 s36, s34, 1
s_lshl_b32 s37, s35, 5
s_lshl_b32 s38, s26, 3
s_add_u32 s37, s37, s38
s_mul_i32 s37, s37, 2688
s_mul_i32 s39, s36, 1344
s_add_u32 s37, s37, s39
s_mul_i32 s38, s38, {RL}
v_add_u32 v42, s38, v4
s_waitcnt lgkmcnt(0)""")
    vm = VM(a); xp_loads(vm)
    for rr in range(8):
        vm.op(f"buffer_load_dwordx4 v[{64+8*rr}:{67+8*rr}], v4, s[{SB}:{SB+3}], s37 offen")
        vm.op(f"buffer_load_dwordx4 v[{68+8*rr}:{71+8*rr}], v4, s[{SB}:{SB+3}], s37 offen offset:1024", ("R", rr))
        if rr < 7: a("s_add_u32 s37, s37, 2688")
    xp_store(vm)
    a("v_cmp_gt_u32 vcc, 20, v2\ns_mov_b64 s[60:61], vcc")
    for rr in range(8):
        vm.wait(("R", rr))
        a(f"ds_write_b128 v42, v[{64+8*rr}:{67+8*rr}] offset:{rr*RL}")
        a("s_mov_b64 exec, s[60:61]")
        a(f"ds_write_b128 v42, v[{68+8*rr}:{71+8*rr}] offset:{rr*RL+1024}")
        a("s_mov_b64 exec, -1")
    a(f"""v_mul_u32_u24 v43, {RL}, v40
v_lshl_add_u32 v43, v41, 4, v43
s_mul_i32 s38, s26, {6*56}
v_add_u32 v43, s38, v43
v_cmp_gt_u32 vcc, 12, v6
v_cndmask_b32 v44, 0, -1, vcc
s_mul_i32 s40, s36, 24
s_mul_i32 s41, s26, 6
s_add_u32 s40, s40, s41
s_waitcnt lgkmcnt(0)
s_barrier""")
    for j in range(6):
        for tile in range(2):
            o = 64 + (j*2+tile)*4
            for hh in range(2):
                a(f"ds_read_b64_tr_b16 v[{o+2*hh}:{o+2*hh+1}], v43 offset:{4*hh*RL + j*56 + 8*tile}")
    a("s_waitcnt lgkmcnt(0)")
    for j in range(6):
        a(f"""s_add_u32 s41, s40, {j}
s_and_b32 s42, s41, 15
s_lshr_b32 s41, s41, 4
s_mul_i32 s42, s42, 3
s_add_u32 s41, s41, s42
s_mul_i32 s41, s41, 28
s_add_u32 s41, s41, s35
s_lshl_b32 s41, s41, 10
s_add_u32 s41, s41, {hex(OFF_WL)}
s_add_u32 s42, s41, {14*1024}""")
        o = 64 + j*8
        for k in range(4): a(f"v_and_b32 v{o+4+k}, v{o+4+k}, v44")
        a(f"buffer_store_dwordx4 v[{o}:{o+3}], v4, s[{WS}:{WS+3}], s41 offen")
        a(f"buffer_store_dwordx4 v[{o+4}:{o+7}], v4, s[{WS}:{WS+3}], s42 offen")
    a("s_endpgm")
    a("K1_wo:")
    srd_load(a, "wo", SB); srd_fin(a, "wo", SB)
    RO = 912
    a(f"""s_sub_u32 s35, s34, 28
s_lshl_b32 s35, s35, 2
s_add_u32 s35, s35, s26
s_mul_i32 s37, s35, {28*896}
s_mul_i32 s38, s26, {32*RO}
v_add_u32 v42, s38, v4
s_waitcnt lgkmcnt(0)""")
    vm = VM(a); xp_loads(vm)
    for rr in range(28):
        imm = (rr % 4) * 896
        vm.op(f"buffer_load_dwordx4 v[{64+4*rr}:{67+4*rr}], v4, s[{SB}:{SB+3}], s37 offen offset:{imm}", ("R", rr))
        if rr % 4 == 3: a(f"s_add_u32 s37, s37, {4*896}")
    xp_store(vm)
    a("v_cmp_gt_u32 vcc, 56, v2\ns_and_saveexec_b64 s[60:61], vcc")
    for rr in range(28):
        vm.wait(("R", rr))
        a(f"ds_write_b128 v42, v[{64+4*rr}:{67+4*rr}] offset:{rr*RO}")
    a(f"""s_mov_b64 exec, s[60:61]
v_mul_u32_u24 v43, {RO}, v40
v_lshl_add_u32 v43, v41, 4, v43
v_add_u32 v43, s38, v43
v_cmp_gt_u32 vcc, 3, v5
v_cndmask_b32 v44, 0, -1, vcc
s_lshl_b32 s41, s35, 10
s_add_u32 s41, s41, {hex(OFF_WO)}
s_waitcnt lgkmcnt(0)""")
    for ct in range(28):
        o = 64 + 4*ct
        for hh in range(2):
            a(f"ds_read_b64_tr_b16 v[{o+2*hh}:{o+2*hh+1}], v43 offset:{4*hh*RO + (32*(ct>>1)+4*(ct&1))*2}")
        if ct % 7 == 6: a("s_waitcnt lgkmcnt(0)")
    for ct in range(28):
        o = 64 + 4*ct
        a(f"v_and_b32 v{o+2}, v{o+2}, v44\nv_and_b32 v{o+3}, v{o+3}, v44")
        a(f"buffer_store_dwordx4 v[{o}:{o+3}], v4, s[{WS}:{WS+3}], s41 offen")
        a(f"s_add_u32 s41, s41, {16*1024}")
    a("K1_end:\ns_endpgm")
    return a.finish() + kd(name, 512, 256)
K1_LDS = 120*1024
```

```python
H=16; D=448; NS=64; CT=28; KS=14
WSZ = 28*14*1024
OFF_WA = 0x0000000
OFF_WB = 0x0620000
OFF_WL = 0x0C40000
OFF_WO = 0x0D90000
OFF_XP = 0x0E00000
OFF_MF = 0x0FC0000
OFF_MX = 0x1040000
OFF_PM = 0x10C0000
OFF_FL = 0x1160000
OFF_ZF = OFF_FL + 0x4000
OFF_KV = 0x1168000
ZERO_END = 0x1178000
OFF_GA = 0x1180000
OFF_OMG = 0x1340000
OFF_PT = 0x1360000
OFF_U  = 0x15E0000
OFF_Z  = 0x1CE0000
OFF_XN = OFF_Z + 64*16*28*1024
WS_END = OFF_XN + 64*28*1024
WS_BYTES = 0x10000000
SENT = 0xFFFFFFFF
FL_Z, FL_P, FL_U, FL_G = 0, 16, 32, 48

def col(ct, n): return 32*(ct>>1) + 8*(n>>2) + 4*(ct&1) + (n&3)
def tau(a, n): return 8*(n>>2) + 4*a + (n&3)
def fperm(k):
    g, k16 = divmod(k, 16); j = k16>>2; half = (k16>>1)&1; e = k16&1
    return 16*g + 8*half + 2*j + e
```

```python
from gen_common import *
from k1 import f32, LOG2E
WS, X, AUX = 4, 8, 12
WSR = f"s[{WS}:{WS+3}]"; XR = f"s[{X}:{X+3}]"; AUXR = f"s[{AUX}:{AUX+3}]"
NZ = 3; NT = 3

def wreg(u, n=4):
    b = 4*u
    return f"a[{b}:{b+n-1}]" if u < 64 else f"v[{120+b-256}:{120+b-256+n-1}]"

def lane_consts(a):
    a("""v_lshrrev_b32 v1, 6, v0
v_readfirstlane_b32 s26, v1
v_and_b32 v1, 63, v0
v_lshlrev_b32 v2, 4, v1
v_lshrrev_b32 v3, 4, v1
v_and_b32 v4, 15, v1""")

def tile_map(a):
    a("""s_and_b32 s32, s26, 1
s_mul_i32 s31, s26, 7
s_add_u32 s30, s31, s32
s_xor_b32 s33, s32, 1
s_mul_i32 s33, s33, 6
s_add_u32 s31, s31, s33""")

def load_weights_natural(a, off_img):
    a(f"""s_mul_i32 s34, s27, 28
s_add_u32 s35, s34, s31
s_add_u32 s34, s34, s30
s_mul_i32 s34, s34, {14*1024}
s_mul_i32 s35, s35, {14*1024}
s_add_u32 s34, s34, {hex(off_img)}
s_add_u32 s35, s35, {hex(off_img)}""")
    for u in range(98):
        s = "s34" if u < 84 else "s35"; j = u if u < 84 else u - 84
        a(f"buffer_load_dwordx4 {wreg(u)}, v2, {WSR}, {s} offen offset:{(j % 4)*1024}")
        if j % 4 == 3: a(f"s_add_u32 {s}, {s}, 4096")

XB = 28*1024
def x_dma(a, sseg, sbuf):
    for j in range(7):
        if j % 4 == 0:
            a(f"s_add_u32 s36, {sseg}, {j*1024}\ns_add_u32 m0, {sbuf}, {j*1024}")
        a(f"buffer_load_dwordx4 v2, {WSR}, s36 offen offset:{(j % 4)*1024} lds")

ACC = 32
RING = 16
def acc(lt, t): return ACC + (lt*2+t)*4
def gemm_segment(a, w_is_A, vaddr):
    def rd(ks):
        for t in range(2):
            b = RING + ((ks & 1)*2 + t)*4
            a(f"ds_read_b128 v[{b}:{b+3}], {vaddr} offset:{(t*14+ks)*1024}")
    rd(0)
    for ks in range(14):
        if ks < 13: rd(ks+1)
        a(f"s_waitcnt lgkmcnt({2 if ks < 13 else 0})")
        for lt in range(7):
            for t in range(2):
                d = acc(lt, t); b = RING + ((ks & 1)*2 + t)*4
                c = "0" if ks == 0 else f"v[{d}:{d+3}]"
                w = wreg(lt*14+ks); xx = f"v[{b}:{b+3}]"
                a(f"v_mfma_f32_16x16x32_bf16 v[{d}:{d+3}], {w if w_is_A else xx}, {xx if w_is_A else w}, {c}")

def role_Z(a):
    a("R_Z:")
    tile_map(a)
    a(f"""s_mov_b32 s40, s28
s_mul_i32 s43, s26, {7*1024}
s_mul_i32 s41, s40, {XB}
s_add_u32 s41, s41, s43
s_add_u32 s41, s41, {hex(OFF_XP)}
s_mov_b32 s42, s43
s_mov_b32 s44, 0""")
    x_dma(a, "s41", "s42")
    load_weights_natural(a, OFF_WB)
    a(f"""v_mov_b32 v5, 1
s_lshl_b32 s45, s27, 2
s_add_u32 s45, s45, {hex(OFF_FL + FL_Z*4)}
v_mov_b32 v6, 0
s_waitcnt vmcnt(0)""")
    a("RZ_loop:")
    a("s_waitcnt vmcnt(7)\ns_barrier")
    a(f"""s_sub_u32 s46, s40, {2*NZ}
s_cmp_lt_i32 s46, 0
s_cbranch_scc1 RZ_noflag
s_cmp_lg_u32 s26, 0
s_cbranch_scc1 RZ_noflag
s_lshl_b32 s46, s46, 8
s_add_u32 s46, s46, s45
s_mov_b64 exec, 1
buffer_store_dword v5, v6, {WSR}, s46 offen sc1
s_mov_b64 exec, -1
RZ_noflag:""")
    a(f"""v_add_u32 v7, s44, v2
s_xor_b32 s44, s44, {XB}
s_add_u32 s42, s44, s43
s_add_u32 s47, s40, {NZ}
s_min_u32 s47, s47, 63
s_mul_i32 s41, s47, {XB}
s_add_u32 s41, s41, s43
s_add_u32 s41, s41, {hex(OFF_XP)}""")
    x_dma(a, "s41", "s42")
    gemm_segment(a, False, "v7")
    a(f"""s_lshl_b32 s47, s40, 4
s_add_u32 s47, s47, s27
s_mul_i32 s47, s47, 28
s_add_u32 s48, s47, s31
s_add_u32 s47, s47, s30
s_lshl_b32 s47, s47, 10
s_lshl_b32 s48, s48, 10
s_add_u32 s47, s47, {hex(OFF_Z)}
s_add_u32 s48, s48, {hex(OFF_Z)}
s_add_u32 s49, s47, 4096""")
    for lt in range(7):
        d0 = acc(lt, 0); d1 = acc(lt, 1)
        a(f"""v_cvt_pk_bf16_f32 v{d0}, v{d0}, v{d0+1}
v_cvt_pk_bf16_f32 v{d0+1}, v{d0+2}, v{d0+3}
v_cvt_pk_bf16_f32 v{d0+2}, v{d1}, v{d1+1}
v_cvt_pk_bf16_f32 v{d0+3}, v{d1+2}, v{d1+3}""")
        s, o = ("s47", lt*1024) if lt < 4 else (("s49", (lt-4)*1024) if lt < 6 else ("s48", 0))
        a(f"buffer_store_dwordx4 v[{d0}:{d0+3}], v2, {WSR}, {s} offen offset:{o} sc1")
    a(f"""s_add_u32 s40, s40, {NZ}
s_cmp_lt_u32 s40, 64
s_cbranch_scc1 RZ_loop
s_waitcnt vmcnt(0)
s_barrier
s_cmp_lg_u32 s26, 0
s_cbranch_scc1 M_end
s_mov_b64 exec, 1
s_sub_u32 s46, s40, {2*NZ}
s_lshl_b32 s46, s46, 8
s_add_u32 s46, s46, s45
buffer_store_dword v5, v6, {WSR}, s46 offen sc1
s_add_u32 s46, s46, {NZ*256}
buffer_store_dword v5, v6, {WSR}, s46 offen sc1
s_endpgm""")
```

```python
from main_roles import *
import team
MAIN_LDS = 160*1024
def gen_main(name, roles, force=None, prof=False):
    a = Asm(); header(a, name)
    a("s_cmp_ge_u32 s2, 256\ns_cbranch_scc1 M_end")
    srd_load(a, "ws", WS); srd_load(a, "x", X)
    a("s_and_b32 s24, s2, 7\ns_lshr_b32 s25, s2, 3")
    lane_consts(a)
    srd_fin(a, "ws", WS); srd_fin(a, "x", X)
    tgt = lambda r: f"R_{r}" if r in roles else "M_end"
    a(f"""s_waitcnt lgkmcnt(0)
s_cmp_lg_u32 s24, 0
s_cbranch_scc1 M_worker
s_mov_b32 s27, s25
s_cmp_lt_u32 s25, 16
s_cbranch_scc1 {tgt('A')}
s_sub_u32 s27, s25, 16
s_cmp_lt_u32 s25, 30
s_cbranch_scc1 {tgt('B')}
s_cmp_eq_u32 s25, 30
s_cbranch_scc1 {tgt('H')}
s_endpgm
M_worker:
s_cmp_eq_u32 s24, 7
s_cbranch_scc0 M_w1
s_add_u32 s27, s25, 32
s_cmp_lt_u32 s27, 63
s_cbranch_scc1 {tgt('F')}
s_endpgm
M_w1:
s_cmp_lt_u32 s24, 5
s_cbranch_scc1 M_w2
s_sub_u32 s27, s24, 5
s_lshl_b32 s27, s27, 5
s_add_u32 s27, s27, s25
s_branch {tgt('L')}
M_w2:
s_sub_u32 s29, s24, 1
s_cmp_lt_u32 s25, 24
s_cbranch_scc1 M_w3
s_lshl_b32 s27, s29, 3
s_add_u32 s27, s27, s25
s_sub_u32 s27, s27, 24
s_branch {tgt('F')}
M_w3:
s_sub_u32 s30, s25, 12
s_cmp_lt_u32 s25, 12
s_cselect_b32 s30, s25, s30
s_mul_i32 s31, s30, 43
s_lshr_b32 s31, s31, 7
s_mul_i32 s28, s31, 3
s_sub_u32 s28, s30, s28
s_lshl_b32 s27, s29, 2
s_add_u32 s27, s27, s31
s_cmp_lt_u32 s25, 12
s_cbranch_scc1 {tgt('Z')}
s_branch {tgt('T')}
M_end:
s_endpgm""")
    if "A" in roles: team.role_A(a, force, prof)
    if "B" in roles: team.role_B(a, force, prof)
    if "H" in roles: team.role_H(a)
    if "Z" in roles: role_Z(a)
    if "T" in roles:
        import workers; workers.role_T(a)
    if "L" in roles:
        import workers; workers.role_L(a)
    if "F" in roles:
        import workers; workers.role_F(a)
    txt = a.finish()
    import re
    txt = re.sub(r"\b(M_\w+|R_\w+|R[ABHZTLF]_\w+)\b", lambda m: f"{name}_{m.group(1)}", txt)
    return txt + kd(name, 512, 256)
```

```python
from main_roles import *
import os
OPT = dict(x.split('=') for x in os.environ.get('OPT','').split(',') if x)
DBG = AUX
NTEAM = 30
MB = 0
TB = 7168
TW = 6400; PS = 1568; GS = 392
SB = TB + 4*TW
RB = 7168
WLB = RB + 4096

def team_common(a, tagp):
    srd_load(a, "dbg", DBG); srd_fin(a, "dbg", DBG)
    a(f"""s_getreg_b32 s33, hwreg(HW_REG_XCC_ID)
s_and_b32 s33, s33, 15
s_lshl_b32 s33, 1, s33
s_waitcnt lgkmcnt(0)
s_cmp_lg_u32 s26, 0
s_cbranch_scc1 {tagp}_reg_done
s_mov_b64 exec, 1
v_mov_b32 v5, s33
v_mov_b32 v6, 0
buffer_atomic_or v5, v6, {AUXR}, 0 offen sc0 sc1
v_mov_b32 v7, 1
s_waitcnt vmcnt(0)
buffer_atomic_add v7, v6, {AUXR}, 0 offen offset:4 sc1
s_mov_b64 exec, -1
{tagp}_reg_done:""")
    for j in range(7):
        a(f"""s_lshl_b32 s33, s26, 1
s_add_u32 s33, s33, {j}
s_sub_u32 s34, s33, 7
s_cmp_ge_u32 s33, 7
s_cselect_b32 s33, s34, s33
s_lshl_b32 s{50+j}, s33, 10""")

def team_mode(a, tagp, force=None):
    a(f"""v_mov_b32 v12, 0
{tagp}_mode:
buffer_load_dword v13, v12, {AUXR}, 0 offen offset:4 sc1
s_waitcnt vmcnt(0)
v_readfirstlane_b32 s33, v13
s_cmp_lt_u32 s33, {NTEAM}
s_cbranch_scc1 {tagp}_mode
buffer_load_dword v13, v12, {AUXR}, 0 offen sc1
s_waitcnt vmcnt(0)
v_readfirstlane_b32 s33, v13
s_bcnt1_i32_b32 s33, s33
s_cmp_eq_u32 s33, 1
s_cselect_b32 s49, 1, 0""")
    if force is not None: a(f"s_mov_b32 s49, {force}")

def poll_m(a, tag, M, depth=1, gap=1):
    rnd = f"""buffer_load_dwordx4 v[{M}:{M+3}], v2, {WSR}, s44 offen sc1
buffer_load_dwordx4 v[{M+4}:{M+7}], v2, {WSR}, s45 offen sc1"""
    for k in range(depth):
        a(rnd)
        if k < depth-1: a(f"s_sleep {gap}")
    a(f"""{tag}:
s_waitcnt vmcnt({2*depth-1})
v_max3_u32 v14, v{M}, v{M+1}, v{M+2}
s_waitcnt vmcnt({2*depth-2})
v_max3_u32 v15, v{M+4}, v{M+5}, v{M+6}
v_max3_u32 v14, v{M+3}, v{M+7}, v14
v_max_u32 v14, v14, v15
v_cmp_eq_u32 vcc, -1, v14
{rnd}
s_cbranch_vccnz {tag}
ds_write_b128 v12, v[{M}:{M+3}] offset:{MB}
ds_write_b128 v13, v[{M+4}:{M+7}] offset:{MB}""")

HP = 7168
HM = 7168 + 64
def hint_wait(a, tag, voff, vdst, soff, imm, depth=3, delay=0):
    ld = f"buffer_load_dword v{vdst}, v{voff}, {WSR}, {soff} offen offset:{imm} sc1"
    a(f"s_cmp_eq_u32 s49, 0\ns_cbranch_scc1 {tag}_done")
    if OPT.get("h1"): a(f"s_cmp_lg_u32 s26, 0\ns_cbranch_scc1 {tag}_bar")
    for k in range(depth):
        a(ld)
        if k < depth-1: a("s_nop 15")
    a(f"""{tag}:
s_waitcnt vmcnt({depth-1})
v_cmp_eq_u32 vcc, -1, v{vdst}
{ld}
s_cbranch_vccnz {tag}""")
    for k in range(delay // 64): a("s_nop 15")
    if delay % 64: a(f"s_nop {delay % 64 // 4 - 1}")
    if OPT.get("h1"): a(f"{tag}_bar:\ns_barrier")
    a(f"{tag}_done:")
def hint_send(a, soff, imm, reg):
    a(f"""s_mov_b64 exec, 1
buffer_store_dword v{reg}, off, {WSR}, {soff} offset:{imm}
s_mov_b64 exec, -1""")

def stamp(a, on, idx, sreg=60):
    if on == 2: a(f"s_memtime s[{sreg+2*idx}:{sreg+2*idx+1}]")
    if on == 3: a(f"s_memrealtime s[{sreg+2*idx}:{sreg+2*idx+1}]")
    if on == 1 and idx == 3: a(f"s_memrealtime s[{sreg+2*idx}:{sreg+2*idx+1}]\ns_memtime s[{sreg}:{sreg+1}]")

PLOG = 140*1024
def prof_log(a, M):
    a(f"""s_waitcnt lgkmcnt(0)
s_lshl_b32 s33, s26, 6
s_add_u32 s33, s33, s40
s_lshl_b32 s33, s33, 4
s_add_u32 s33, s33, {PLOG}
v_mov_b32 v{M}, s60
v_mov_b32 v{M+1}, s62
v_mov_b32 v{M+2}, s64
v_mov_b32 v{M+3}, s66
v_mov_b32 v{M+4}, s33
ds_write_b128 v{M+4}, v[{M}:{M+3}]""")
def prof_dump(a, M, cu):
    a(f"""s_lshl_b32 s33, s26, 10
s_add_u32 s33, s33, {PLOG}
v_add_u32 v{M+4}, s33, v2
s_waitcnt lgkmcnt(0)
ds_read_b128 v[{M}:{M+3}], v{M+4}
s_add_u32 s33, s27, {cu}
s_lshl_b32 s33, s33, 2
s_add_u32 s33, s33, s26
s_lshl_b32 s33, s33, 10
s_add_u32 s33, s33, {hex(0x4000000)}
s_waitcnt lgkmcnt(0)
buffer_store_dwordx4 v[{M}:{M+3}], v2, {WSR}, s33 offen""")

OOB = 0x40000000
DPM = "row_mask:0xf bank_mask"
def role_A(a, force=None, prof=False):
    M = 16; T = 44; XK = 72; S = 100; MK = 112
    a("R_A:")
    team_common(a, "RA")
    tile_map(a)
    a(f"""s_mul_i32 s34, s27, 28
s_add_u32 s35, s34, s31
s_add_u32 s34, s34, s30
s_mul_i32 s34, s34, {14*1024}
s_mul_i32 s35, s35, {14*1024}""")
    for lt in range(7):
        for j in range(7):
            base = "s34" if lt < 6 else "s35"
            a(f"s_lshl_b32 s36, s{50+j}, 1\ns_add_u32 s36, s36, {base}")
            if 0 < lt < 6: a(f"s_add_u32 s36, s36, {lt*14*1024}")
            for e in range(2):
                a(f"buffer_load_dwordx4 {wreg(lt*14+2*j+e)}, v2, {WSR}, s36 offen offset:{e*1024}")
    a(f"""s_lshr_b32 s37, s30, 1
s_lshr_b32 s38, s31, 1
v_and_b32 v12, 7, v4
v_lshrrev_b32 v13, 3, v4
v_lshrrev_b32 v14, 2, v4
v_and_b32 v15, 3, v4
v_and_b32 v16, 1, v4
v_lshl_add_u32 v16, v14, 1, v16
v_lshlrev_b32 v16, 4, v16
v_lshl_add_u32 v16, v3, 7, v16
s_lshl_b32 s33, s37, 9
v_add_u32 v20, s33, v16
s_lshl_b32 s33, s38, 9
s_lshl_b32 s34, s32, 3
s_add_u32 s33, s33, s34
v_add_u32 v21, s33, v16
s_mul_i32 s33, s26, {TW}
s_add_u32 s33, s33, {TB}
v_mul_u32_u24 v5, {GS}, v14
v_lshl_add_u32 v5, v15, 5, v5
v_lshl_add_u32 v5, v3, 3, v5
v_add_u32 v5, s33, v5
v_mul_u32_u24 v6, {GS}, v3
v_lshl_add_u32 v6, v14, 5, v6
v_lshl_add_u32 v6, v15, 3, v6
v_add_u32 v6, s33, v6
v_lshl_add_u32 v7, v3, 1, v13
v_add_u32 v7, v7, v12
v_and_b32 v7, 7, v7
v_lshl_add_u32 v7, v12, 3, v7
v_lshlrev_b32 v7, 4, v7
s_lshl_b32 s33, s26, 10
s_add_u32 s33, s33, {SB}
v_add_u32 v7, s33, v7
v_lshrrev_b32 v17, 3, v1
v_and_b32 v18, 7, v1
v_add_u32 v8, v17, v18
v_and_b32 v8, 7, v8
v_lshl_add_u32 v8, v17, 3, v8
v_lshlrev_b32 v8, 4, v8
v_add_u32 v8, {SB}, v8
s_lshl_b32 s33, s38, 10
s_lshl_b32 s34, s32, 3
s_add_u32 s33, s33, s34
v_add_u32 v11, s33, v2
s_lshl_b32 s33, s37, 10
v_add_u32 v10, s33, v2""")
    a(f"""v_lshrrev_b32 v19, 1, v18
v_and_b32 v22, 1, v18
s_and_b32 s33, s27, 3
s_lshr_b32 s34, s27, 2
s_mul_i32 s34, s34, 2560
v_lshlrev_b32 v25, 4, v17
v_add_u32 v25, s34, v25
s_lshl_b32 s35, s33, 9
v_lshl_add_u32 v9, v19, 7, v25
v_lshl_add_u32 v9, v22, 3, v9
v_add_u32 v9, s35, v9
s_lshl_b32 s35, s33, 7
s_add_u32 s35, s35, 2048
v_lshl_add_u32 v27, v19, 2, v25
v_add_u32 v27, s35, v27
v_mov_b32 v28, {hex(OOB)}
v_cmp_eq_u32 vcc, 0, v22
v_cndmask_b32 v0, v28, v27, vcc
v_mov_b32 v28, 0x44444444
v_mov_b32 v29, 0xeeeeeeee
v_cmp_eq_u32 vcc, 0, v13
v_cndmask_b32 v1, v29, v28, vcc
v_mov_b32 v3, v20
v_mov_b32 v4, v21
s_mov_b32 s40, 0
s_mov_b32 s41, {hex(OFF_MF)}
s_mov_b32 s42, {hex(OFF_PM)}
s_mov_b32 s43, {hex(OFF_XN)}""")
    def xk_loads():
        a(f"s_add_u32 s33, s43, {14*1024}")
        for kt in range(2):
            b = XK + 14*kt; so = "s33" if kt else "s43"
            for p in range(3):
                a(f"buffer_load_dwordx4 v[{b+4*p}:{b+4*p+3}], v10, {WSR}, {so} offen offset:{p*1024}")
            a(f"buffer_load_dwordx2 v[{b+12}:{b+13}], v11, {WSR}, {so} offen")
    xk_loads()
    team_mode(a, "RA", force)
    for i in range(28): a(f"v_mov_b32 v{T+i}, 0")
    a("RA_loop:")
    a("""s_add_u32 s44, s41, s50
s_add_u32 s45, s41, s51
v_add_u32 v12, s50, v2
v_add_u32 v13, s51, v2""")
    if OPT.get("hint"):
        a(f"""v_lshrrev_b32 v{M+8}, 2, v2
v_min_u32 v{M+8}, 52, v{M+8}
s_add_u32 s33, s41, 4096
s_cmp_eq_u32 s40, 0
s_cbranch_scc1 RA_hm_done""")
        hint_wait(a, "RA_hm", M+8, M+9, "s33", HM-4096, int(OPT.get("hd", 3)), int(OPT.get("mdelay", 0)))
    poll_m(a, "RA_poll", M, int(OPT.get("ad", 2)), int(OPT.get("gap", 1)))
    stamp(a, prof, 0)
    def sm(lt, j):
        a(f"v_smfmac_f32_16x16x64_bf16 v[{T+4*lt}:{T+4*lt+3}], v[{M+4*j}:{M+4*j+3}], {wreg(lt*14+2*j, 8)}, v1")
    tmp = [MK+7, 12, 13, 14, 15]
    for lt in range(7):
        sm(lt, 0)
        if lt < 5: a(f"v_add_u32 v{tmp[lt]}, s{52+lt}, v2")
    a("s_waitcnt lgkmcnt(0)\ns_barrier")
    rd = [f"ds_read_b128 v[{M+4*j}:{M+4*j+3}], v{tmp[j-2]} offset:{MB}" for j in range(2, 7)]
    rd += [f"ds_read_b128 v[{MK}:{MK+3}], v3 offset:{MB}", f"ds_read_b128 v[{MK+4}:{MK+7}], v3 offset:{MB+512}"]
    a(rd[0]); a(rd[1])
    for lt in range(7):
        sm(lt, 1)
        if lt < 5: a(rd[2+lt])
    def cvt(lt, k): a(f"v_cvt_pk_bf16_f32 v{14+k}, v{T+4*lt+2*k}, v{T+4*lt+2*k+1}")
    def wr(lt): a(f"ds_write_b64 v5, v[14:15] offset:{(lt>>1)*PS + (lt&1)*128}")
    def tr(p, hh): a(f"ds_read_b64_tr_b16 v[{T+8*p+2*hh}:{T+8*p+2*hh+1}], v6 offset:{p*PS + hh*128}")
    def dense(p, kt):
        d = S + 4*kt; c = "0" if p == 0 else f"v[{d}:{d+3}]"
        if p < 3:
            key = f"v[{XK+14*kt+4*p}:{XK+14*kt+4*p+3}]" if kt < 2 else f"v[{MK+4*(p&1)}:{MK+4*(p&1)+3}]"
            a(f"v_mfma_f32_16x16x32_bf16 v[{d}:{d+3}], {key}, v[{T+8*p}:{T+8*p+3}], {c}")
        else:
            key = f"v[{XK+14*kt+12}:{XK+14*kt+13}]" if kt < 2 else f"v[{MK+4}:{MK+5}]"
            a(f"v_mfma_f32_16x16x16_bf16 v[{d}:{d+3}], {key}, v[{T+24}:{T+25}], {c}")
    fill = {lt: [] for lt in range(7)}
    for lt in range(2, 7):
        s = lt - 2
        fill[lt] = [lambda s=s: cvt(s, 0), lambda s=s: cvt(s, 1), lambda s=s: wr(s)]
        if s & 1: fill[lt] += [lambda s=s: tr(s >> 1, 0), lambda s=s: tr(s >> 1, 1)]
    for lt in range(7):
        for jj, j in enumerate(range(2, 7)):
            if lt == 0: a(f"s_waitcnt lgkmcnt({6-jj})")
            sm(lt, j)
            if jj < len(fill[lt]): fill[lt][jj]()
        if lt == 4:
            a("s_waitcnt lgkmcnt(1)")
            for kt in range(3): dense(0, kt)
            a(f"ds_read_b128 v[{MK}:{MK+3}], v3 offset:{MB+1024}")
        if lt == 6:
            stamp(a, prof, 1)
            a("s_waitcnt lgkmcnt(1)")
            dense(1, 0); cvt(5, 0); dense(1, 1); cvt(5, 1); dense(1, 2)
            wr(5); tr(2, 0); tr(2, 1)
            a(f"ds_read_b64 v[{MK+4}:{MK+5}], v4 offset:{MB}")
            cvt(6, 0); cvt(6, 1); wr(6); tr(3, 0)
            a("s_waitcnt lgkmcnt(3)")
            for kt in range(3): dense(2, kt)
            a("s_waitcnt lgkmcnt(0)")
            for kt in range(3): dense(3, kt)
    for i in range(6): a(f"v_mov_b32 v{T+i}, 0")
    for r in range(4): a(f"v_add_f32_dpp v{S+r}, v{S+r}, v{S+r} row_ror:8 {DPM}:0x3")
    for r in range(4): a(f"v_add_f32_dpp v{S+r}, v{S+4+r}, v{S+4+r} row_ror:8 {DPM}:0xc")
    a(f"""v_add_f32_dpp v{S+8}, v{S+8}, v{S+8} row_ror:8 {DPM}:0x3
ds_write_b128 v7, v[{S}:{S+3}]
v_add_f32_dpp v{S+8}, v{S+9}, v{S+9} row_ror:8 {DPM}:0xc
ds_write_b32 v7, v{S+8} offset:4096""")
    for i in range(6, 28): a(f"v_mov_b32 v{T+i}, 0")
    a(f"""s_add_u32 s40, s40, 1
s_add_u32 s41, s41, 8192
s_add_u32 s43, s43, {32*896}
s_cmp_lg_u32 s26, 0
s_waitcnt lgkmcnt(0)
s_barrier
s_cbranch_scc1 RA_other""")
    if not OPT.get("ack"): stamp(a, prof, 2)
    for w in range(4):
        a(f"ds_read_b128 v[{M+4*w}:{M+4*w+3}], v8 offset:{1024*w}\nds_read_b32 v{M+16+w}, v8 offset:{4096+1024*w}")
    X0, Y, R, E = M, M+16, M+20, M+21
    a(f"""s_cmp_eq_u32 s49, 0
s_waitcnt lgkmcnt(4)
v_pk_add_f32 v[{M}:{M+1}], v[{M}:{M+1}], v[{M+4}:{M+5}]
v_pk_add_f32 v[{M+2}:{M+3}], v[{M+2}:{M+3}], v[{M+6}:{M+7}]
v_add_f32 v{Y}, v{Y}, v{Y+1}
s_waitcnt lgkmcnt(0)
v_pk_add_f32 v[{M+8}:{M+9}], v[{M+8}:{M+9}], v[{M+12}:{M+13}]
v_pk_add_f32 v[{M+10}:{M+11}], v[{M+10}:{M+11}], v[{M+14}:{M+15}]
v_add_f32 v{Y+2}, v{Y+2}, v{Y+3}
v_pk_add_f32 v[{M}:{M+1}], v[{M}:{M+1}], v[{M+8}:{M+9}]
v_pk_add_f32 v[{M+2}:{M+3}], v[{M+2}:{M+3}], v[{M+10}:{M+11}]
v_add_f32 v{Y}, v{Y}, v{Y+2}
v_max3_f32 v{R}, v{M}, v{M+1}, v{M+2}
v_max3_f32 v{R}, v{M+3}, v{Y}, v{R}""")
    steps = ("quad_perm:[1,0,3,2]", "quad_perm:[2,3,0,1]", "row_half_mirror")
    for mod in steps: a(f"v_max_f32_dpp v{R}, v{R}, v{R} {mod} {DPM}:0xf")
    a(f"""v_sub_f32 v{Y}, v{Y}, v{R}
v_sub_f32 v{M}, v{M}, v{R}
v_exp_f32 v{Y}, v{Y}
v_sub_f32 v{M+1}, v{M+1}, v{R}
v_exp_f32 v{M}, v{M}
v_sub_f32 v{M+2}, v{M+2}, v{R}
v_exp_f32 v{M+1}, v{M+1}
v_sub_f32 v{M+3}, v{M+3}, v{R}
v_exp_f32 v{M+2}, v{M+2}
v_add_f32 v{R}, v{Y}, v{M}
v_exp_f32 v{M+3}, v{M+3}
v_add_f32 v{R}, v{R}, v{M+1}
v_add_f32 v{R}, v{R}, v{M+2}
v_add_f32 v{R}, v{R}, v{M+3}
v_mov_b32_dpp v{Y+1}, v{Y} quad_perm:[1,0,3,2] {DPM}:0xf""")
    for mod in steps: a(f"v_add_f32_dpp v{R}, v{R}, v{R} {mod} {DPM}:0xf")
    a(f"""v_rcp_f32 v{R}, v{R}
v_pk_mul_f32 v[{M}:{M+1}], v[{M}:{M+1}], v[{R}:{R+1}] op_sel_hi:[1,0]
v_pk_mul_f32 v[{M+2}:{M+3}], v[{M+2}:{M+3}], v[{R}:{R+1}] op_sel_hi:[1,0]
v_pk_mul_f32 v[{Y}:{Y+1}], v[{Y}:{Y+1}], v[{R}:{R+1}] op_sel_hi:[1,0]
v_cvt_pk_bf16_f32 v{M}, v{M}, v{M+1}
v_cvt_pk_bf16_f32 v{M+1}, v{M+2}, v{M+3}
v_cvt_pk_bf16_f32 v{Y}, v{Y}, v{Y+1}
v_min_u32 v{M}, -2, v{M}
v_min_u32 v{M+1}, -2, v{M+1}
v_min_u32 v{Y}, -2, v{Y}
s_cbranch_scc1 RA_slow
buffer_store_dwordx2 v[{M}:{M+1}], v9, {WSR}, s42 offen
buffer_store_dword v{Y}, v0, {WSR}, s42 offen
RA_st:""")
    if OPT.get("ack"):
        stamp(a, prof, 2); a("s_waitcnt vmcnt(0)")
    stamp(a, prof, 3)
    a("s_barrier")
    a("s_add_u32 s42, s42, 10240")
    if OPT.get("xlat"): a("s_memtime s[62:63]\ns_waitcnt lgkmcnt(0)")
    if not OPT.get("nox"): xk_loads()
    if OPT.get("xlat"): a("s_memtime s[64:65]\ns_waitcnt vmcnt(0)\ns_memtime s[66:67]")
    if prof: prof_log(a, M)
    a("""s_cmp_lt_u32 s40, 63
s_cbranch_scc1 RA_loop""")
    if prof: prof_dump(a, M, 0)
    a(f"""s_endpgm
RA_other:
s_cmp_lg_u32 s26, 1
s_cbranch_scc1 RA_st""")
    if OPT.get("hint"):
        for k in range(int(OPT.get("plead", 0)) // 64): a("s_nop 15")
        a(f"s_lshl_b32 s33, s27, 2\ns_add_u32 s33, s33, s41\ns_sub_u32 s33, s33, 4096")
        hint_send(a, "s33", HP-4096, 1)
    a(f"""s_branch RA_st
RA_slow:
buffer_store_dwordx2 v[{M}:{M+1}], v9, {WSR}, s42 offen sc1
buffer_store_dword v{Y}, v0, {WSR}, s42 offen sc1
s_branch RA_st""")

def role_B(a, force=None, prof=False):
    M = 16; U = 44; Z = 76; UB = 108; TMP = 116; KEEP = 132; FLG = 134
    NREG = 46
    def opidx(t, j):
        if t < 6: return t*7 + j
        return 42 + (t-6)*2 + j if j < 2 else NREG + (t-6)*5 + (j-2)
    def breg(o, half=None):
        b = 8*o
        k, bb = ("a", b) if o < 32 else ("v", 144 + b - 256)
        if half is None: return f"{k}[{bb}:{bb+7}]"
        return f"{k}[{bb+4*half}:{bb+4*half+3}]"
    a("R_B:")
    team_common(a, "RB")
    a(f"""s_lshl_b32 s34, s26, 2
s_mul_i32 s34, s34, 28
s_lshl_b32 s35, s27, 1
s_add_u32 s34, s34, s35
s_mul_i32 s34, s34, {14*1024}
s_add_u32 s34, s34, {hex(OFF_WB)}
s_mul_i32 s37, s26, {20*1024}
s_add_u32 s37, s37, {WLB}""")
    for t in range(8):
        for j in range(7):
            o = opidx(t, j)
            a(f"s_lshl_b32 s36, s{50+j}, 1\ns_add_u32 s36, s36, s34")
            off = ((t >> 1)*28 + (t & 1))*14*1024
            if off: a(f"s_add_u32 s36, s36, {off}")
            if o >= NREG:
                a(f"s_add_u32 m0, s37, {(o-NREG)*2048}")
            for e in range(2):
                if o < NREG: a(f"buffer_load_dwordx4 {breg(o, e)}, v2, {WSR}, s36 offen offset:{e*1024}")
                else: a(f"buffer_load_dwordx4 v2, {WSR}, s36 offen offset:{e*1024} lds")
    a(f"""v_and_b32 v12, 7, v4
v_lshrrev_b32 v13, 3, v4
v_lshlrev_b32 v3, 7, v3
v_lshl_add_u32 v3, v12, 4, v3
v_lshl_add_u32 v5, v13, 9, v3
s_lshl_b32 s33, s26, 10
s_add_u32 s33, s33, {RB}
v_add_u32 v6, s33, v5
v_add_u32 v7, s37, v2
v_and_b32 v8, 31, v1
v_lshlrev_b32 v8, 4, v8
v_lshrrev_b32 v9, 5, v1
v_lshl_add_u32 v8, v9, 3, v8
s_lshl_b32 s33, s27, 9
v_add_u32 v8, s33, v8
v_mov_b32 v14, {hex(OOB)}
v_cmp_gt_u32 vcc, 64, v0
v_cndmask_b32 v4, v14, v8, vcc
v_cmp_eq_u32 vcc, 64, v0
v_cndmask_b32 v10, v14, 0, vcc
v_and_b32 v9, 3, v1
s_lshl_b32 s33, s26, 2
v_add_u32 v9, s33, v9
v_lshlrev_b32 v9, 2, v9
v_mov_b32 v11, 1
v_mov_b32 v28, 0x44444444
v_mov_b32 v29, 0xeeeeeeee
v_cmp_eq_u32 vcc, 0, v13
v_cndmask_b32 v1, v29, v28, vcc
s_mov_b32 s40, 0
s_mov_b32 s41, {hex(OFF_MF)}
s_mul_i32 s42, s26, 2560
s_add_u32 s42, s42, {hex(OFF_PM)}
s_lshl_b32 s43, s26, 2
s_mul_i32 s43, s43, 28
s_lshl_b32 s33, s27, 1
s_add_u32 s43, s43, s33
s_lshl_b32 s43, s43, 10
s_add_u32 s43, s43, {hex(OFF_Z)}
s_mul_i32 s46, s26, 28
s_add_u32 s46, s46, s33
s_lshl_b32 s46, s46, 10
s_add_u32 s46, s46, {hex(OFF_U - 4*28*1024)}
s_mov_b32 s47, {hex(OFF_FL + FL_Z*4)}
s_lshl_b32 s48, s27, 2
s_add_u32 s48, s48, {hex(OFF_FL + FL_U*4 - 512)}
buffer_load_dword v{FLG}, v9, {WSR}, s47 offen sc1""")
    team_mode(a, "RB", force)
    for i in range(32): a(f"v_mov_b32 v{U+i}, 0")
    a("RB_loop:")
    a(f"""s_add_u32 s44, s41, s50
s_add_u32 s45, s41, s51
v_add_u32 v12, s50, v2
v_add_u32 v13, s51, v2
s_add_u32 s58, s41, {hex(OFF_MX-OFF_MF)}
s_cmp_eq_u32 s40, 0
s_cselect_b32 s57, {hex(OOB)}, s46
s_cselect_b32 s58, {hex(OOB)}, s58
s_cmp_lt_u32 s40, 2
s_cselect_b32 s59, {hex(OOB)}, s48
s_cmp_eq_u32 s40, 63
s_cselect_b32 s68, {hex(OOB)}, s43
s_cbranch_scc1 RB_zok
v_cmp_eq_u32 vcc, 0, v{FLG}
s_cbranch_vccz RB_zok
RB_zspin:
s_sleep 2
buffer_load_dword v{FLG}, v9, {WSR}, s47 offen sc1
s_waitcnt vmcnt(0)
v_cmp_eq_u32 vcc, 0, v{FLG}
s_cbranch_vccnz RB_zspin
RB_zok:
s_add_u32 s47, s47, 256
s_add_u32 s69, s68, {28*1024}
s_add_u32 s70, s68, {2*28*1024}
s_add_u32 s71, s68, {3*28*1024}""")
    if int(OPT.get("bsleep", 0)): a(f"s_sleep {OPT['bsleep']}")
    poll_m(a, "RB_poll", M, int(OPT.get("bd", 1)))
    if not OPT.get("cnt"): stamp(a, prof, 0)
    slow = []
    if not OPT.get("noz"):
        for hl in range(4):
            for ctl in range(2):
                b = Z + (hl*2+ctl)*4
                slow.append(f"buffer_load_dwordx4 v[{b}:{b+3}], v2, {WSR}, s{68+hl} offen offset:{ctl*1024} sc1")
    slow += [f"buffer_load_dword v{FLG}, v9, {WSR}, s47 offen sc1",
             f"buffer_store_dwordx2 v[{KEEP}:{KEEP+1}], v4, {WSR}, s58 offen sc1",
             f"buffer_store_dwordx4 v[{UB}:{UB+3}], v2, {WSR}, s57 offen sc1",
             f"buffer_store_dwordx4 v[{UB+4}:{UB+7}], v2, {WSR}, s57 offen offset:1024 sc1",
             f"buffer_store_dword v11, v10, {WSR}, s59 offen sc1"]
    if OPT.get("nou"): slow = [x for x in slow if "store" not in x]
    def sm(t, j, src=None):
        a(f"v_smfmac_f32_16x16x64_bf16 v[{U+4*t}:{U+4*t+3}], v[{M+4*j}:{M+4*j+3}], {src or breg(opidx(t, j))}, v1")
    tmp = [0, 12, 13, 14, 15]
    for t in range(8):
        sm(t, 0)
        if t < 5: a(f"v_add_u32 v{tmp[t]}, s{52+t}, v2")
        elif slow: a(slow.pop(0))
    a("s_waitcnt lgkmcnt(0)\ns_barrier")
    rd = [f"ds_read_b128 v[{M+4*j}:{M+4*j+3}], v{tmp[j-2]} offset:{MB}" for j in range(2, 7)]
    def lw(k):
        b = TMP + 8*(k & 1)
        return [f"ds_read_b128 v[{b}:{b+3}], v7 offset:{k*2048}", f"ds_read_b128 v[{b+4}:{b+7}], v7 offset:{k*2048+1024}"]
    rd += lw(0)
    for t in range(8):
        sm(t, 1)
        if rd: a(rd.pop(0))
    a("s_waitcnt lgkmcnt(2)")
    regl = [(t, j) for t in range(6) for j in range(2, 7)]
    for k in range(10):
        f = (lw(k+1) if k < 9 else []) + ([slow.pop(0)] if slow else [])
        for (t, j) in regl[3*k:3*k+3]:
            sm(t, j)
            if f: a(f.pop(0))
        a(f"s_waitcnt lgkmcnt({2 if k < 9 else 0})")
        b = TMP + 8*(k & 1)
        sm(6 + k//5, 2 + k % 5, f"v[{b}:{b+7}]")
    assert not slow
    for ctl in range(2):
        u = lambda hl, r: U + 4*(hl*2+ctl) + r
        for r in range(4):
            a(f"v_permlane32_swap_b32 v{u(0,r)}, v{u(2,r)}\nv_permlane32_swap_b32 v{u(1,r)}, v{u(3,r)}")
        for r in range(4):
            a(f"v_add_f32 v{u(0,r)}, v{u(0,r)}, v{u(2,r)}\nv_add_f32 v{u(1,r)}, v{u(1,r)}, v{u(3,r)}")
        o = UB + 4*ctl
        a(f"""v_cvt_pk_bf16_f32 v{o}, v{u(0,0)}, v{u(0,1)}
v_cvt_pk_bf16_f32 v{o+1}, v{u(0,2)}, v{u(0,3)}
v_cvt_pk_bf16_f32 v{o+2}, v{u(1,0)}, v{u(1,1)}
v_cvt_pk_bf16_f32 v{o+3}, v{u(1,2)}, v{u(1,3)}
v_permlane16_swap_b32 v{o}, v{o+2}
v_permlane16_swap_b32 v{o+1}, v{o+3}""")
    a(f"""s_add_u32 s46, s46, {4*28*1024}
s_add_u32 s48, s48, 256
s_cmp_eq_u32 s40, 63
s_cbranch_scc1 RB_last""")
    if not OPT.get("quick"): stamp(a, prof, 1)
    for i in range(32): a(f"v_mov_b32 v{U+i}, 0")
    E0, O0 = TMP, TMP+8
    def mf(d, b, p, first):
        a(f"v_mfma_f32_16x16x32_bf16 v[{d}:{d+3}], v[{b}:{b+3}], v[{p}:{p+3}], {'0' if first else f'v[{d}:{d+3}]'}")
    PD = int(OPT.get("pd", 2))
    rnd = f"""buffer_load_dwordx4 v[{M}:{M+3}], v5, {WSR}, s42 offen sc1
buffer_load_dwordx4 v[{M+4}:{M+7}], v5, {WSR}, s42 offen offset:1024 sc1
buffer_load_dwordx4 v[{M+8}:{M+11}], v3, {WSR}, s42 offen offset:2048 sc1"""
    if OPT.get("hint"):
        a("s_add_u32 s33, s41, 4096")
        a(f"v_lshrrev_b32 v{M+13}, 2, v2\nv_min_u32 v{M+13}, 60, v{M+13}")
        hint_wait(a, "RB_hp", M+13 if OPT.get("h1") else 9, M+12, "s33", HP-4096, int(OPT.get("hd", 3)), int(OPT.get("pdelay", 0)))
    if OPT.get("cnt"):
        stamp(a, prof, 0); a("s_mov_b32 s64, 0")
    for k in range(PD):
        a(rnd)
        if k < PD-1: a(f"s_sleep {OPT.get('gap', 1)}")
    a("RB_pollp:")
    if OPT.get("cnt"): a("s_add_u32 s64, s64, 1")
    a(f"""s_waitcnt vmcnt({3*PD-1})
v_max3_u32 v14, v{M}, v{M+1}, v{M+2}
v_max_u32 v14, v14, v{M+3}
v_cmp_eq_u32 vcc, -1, v14
{rnd}
s_cbranch_vccnz RB_pollp""")
    if OPT.get("quick"): stamp(a, prof, 1)
    mf(E0, Z, M, True); mf(O0, Z + 8, M, True)
    a(f"s_waitcnt vmcnt({3*PD+1})")
    mf(E0+4, Z + 4, M, True); a(f"v_max3_u32 v14, v{M+4}, v{M+5}, v{M+6}")
    mf(O0+4, Z + 12, M, True); a(f"v_max_u32 v14, v14, v{M+7}")
    mf(O0, Z + (3*2+0)*4, M+4, False)
    mf(O0+4, Z + (3*2+1)*4, M+4, False)
    a(f"s_waitcnt vmcnt({3*PD})")
    mf(E0, Z + (2*2+0)*4, M+4, False); a(f"v_max3_u32 v15, v{M+8}, v{M+9}, v{M+10}")
    mf(E0+4, Z + (2*2+1)*4, M+4, False); a(f"v_max3_u32 v14, v14, v15, v{M+11}")
    mf(E0, UB, M+8, False); a("v_cmp_eq_u32 vcc, -1, v14")
    mf(E0+4, UB+4, M+8, False)
    X = 136
    for r in range(4): a(f"v_add_f32_dpp v{X+r}, v{O0+r}, v{E0+r} row_ror:8 {DPM}:0x3")
    a("s_cbranch_vccnz RB_pollp")
    if not OPT.get("cnt"): stamp(a, prof, 2)
    for r in range(4): a(f"v_add_f32_dpp v{X+r}, v{E0+4+r}, v{O0+4+r} row_ror:8 {DPM}:0xc")
    a(f"""ds_write_b128 v6, v[{X}:{X+3}]
s_add_u32 s41, s41, 8192
s_add_u32 s42, s42, 10240
s_add_u32 s43, s43, {16*28*1024}
s_add_u32 s40, s40, 1
s_cmp_lg_u32 s26, 0
s_waitcnt lgkmcnt(0)
s_barrier
s_cbranch_scc1 RB_other""")
    for w in range(4):
        a(f"ds_read_b128 v[{TMP+4*w}:{TMP+4*w+3}], v2 offset:{RB + 1024*w}")
    a(f"""s_cmp_eq_u32 s49, 0
s_waitcnt lgkmcnt(2)
v_pk_add_f32 v[{TMP}:{TMP+1}], v[{TMP}:{TMP+1}], v[{TMP+4}:{TMP+5}]
v_pk_add_f32 v[{TMP+2}:{TMP+3}], v[{TMP+2}:{TMP+3}], v[{TMP+6}:{TMP+7}]
s_waitcnt lgkmcnt(0)
v_pk_add_f32 v[{TMP+8}:{TMP+9}], v[{TMP+8}:{TMP+9}], v[{TMP+12}:{TMP+13}]
v_pk_add_f32 v[{TMP+10}:{TMP+11}], v[{TMP+10}:{TMP+11}], v[{TMP+14}:{TMP+15}]
v_pk_add_f32 v[{TMP}:{TMP+1}], v[{TMP}:{TMP+1}], v[{TMP+8}:{TMP+9}]
v_pk_add_f32 v[{TMP+2}:{TMP+3}], v[{TMP+2}:{TMP+3}], v[{TMP+10}:{TMP+11}]
v_cvt_pk_bf16_f32 v{KEEP}, v{TMP}, v{TMP+1}
v_cvt_pk_bf16_f32 v{KEEP+1}, v{TMP+2}, v{TMP+3}
v_min_u32 v{KEEP}, -2, v{KEEP}
v_min_u32 v{KEEP+1}, -2, v{KEEP+1}
s_cbranch_scc1 RB_slow
buffer_store_dwordx2 v[{KEEP}:{KEEP+1}], v8, {WSR}, s41 offen
RB_next:""")
    stamp(a, prof, 3)
    if prof: prof_log(a, TMP)
    a(f"""s_branch RB_loop
RB_other:
s_cmp_lg_u32 s26, 1
s_cbranch_scc1 RB_next""")
    if OPT.get("hint"):
        a(f"s_lshl_b32 s33, s27, 2\ns_add_u32 s33, s33, s41\ns_add_u32 s33, s33, 4096")
        hint_send(a, "s33", HM-4096, 11)
    a(f"""s_branch RB_next
RB_slow:
buffer_store_dwordx2 v[{KEEP}:{KEEP+1}], v8, {WSR}, s41 offen sc1
s_branch RB_next
RB_last:""")
    if prof: prof_dump(a, TMP, 16)
    a(f"""buffer_store_dwordx4 v[{UB}:{UB+3}], v2, {WSR}, s46 offen sc1
buffer_store_dwordx4 v[{UB+4}:{UB+7}], v2, {WSR}, s46 offen offset:1024 sc1
s_waitcnt vmcnt(0)
s_barrier
buffer_store_dword v11, v10, {WSR}, s48 offen sc1
buffer_store_dword v11, v10, {WSR}, s48 offen offset:256 sc1
s_endpgm""")

def role_H(a):
    a(f"""R_H:
v_lshlrev_b32 v9, 7, v0
v_mov_b32 v6, 0
v_mov_b32 v10, {hex(OOB)}
v_cmp_gt_u32 vcc, 224, v0
v_cndmask_b32 v5, v10, v9, vcc
v_cmp_gt_u32 vcc, 64, v0
v_cndmask_b32 v11, v10, v9, vcc
v_cmp_gt_u32 vcc, 80, v0
v_cndmask_b32 v12, v10, v9, vcc
s_mov_b32 s40, 0
s_mov_b32 s41, {hex(OFF_MF)}
s_mov_b32 s43, {hex(OFF_XN + 32*896)}
s_mov_b32 s44, {hex(OFF_MF + 8192)}
s_mov_b32 s45, {hex(OFF_PM)}
buffer_load_dword v8, v5, {WSR}, s43 offen
buffer_load_dword v8, v11, {WSR}, s44 offen
buffer_load_dword v8, v12, {WSR}, s45 offen
RH_loop:
buffer_load_dword v7, v6, {WSR}, s41 offen sc1
s_waitcnt vmcnt(0)
v_readfirstlane_b32 s33, v7
s_cmp_lg_u32 s33, -1
s_cbranch_scc1 RH_go
s_sleep 8
s_branch RH_loop
RH_go:
s_add_u32 s43, s43, {32*896}
s_add_u32 s44, s44, 8192
s_add_u32 s45, s45, 10240
buffer_load_dword v8, v11, {WSR}, s44 offen
buffer_load_dword v8, v12, {WSR}, s45 offen
buffer_load_dword v8, v5, {WSR}, s43 offen
s_add_u32 s41, s41, 8192
s_add_u32 s40, s40, 1
s_cmp_lt_u32 s40, 62
s_cbranch_scc1 RH_loop
s_endpgm""")
```

```python
from main_roles import *
OOB = 0x40000000
DPM = "row_mask:0xf bank_mask:0xf"
NEGBIG = f32(-1e9*LOG2E)

def xrow_reduce(a, op, r, t):
    a(f"""v_mov_b32 v{t}, v{r}
v_permlane16_swap_b32 v{r}, v{t}
{op} v{r}, v{r}, v{t}
v_mov_b32 v{t}, v{r}
v_permlane32_swap_b32 v{r}, v{t}
{op} v{r}, v{r}, v{t}""")

def role_T(a):
    KEY = 88; SX = 2*XB; SX2 = SX + 16384
    Sa = lambda kt, t: acc(2*kt+1, t)
    a("R_T:")
    tile_map(a)
    a(f"""s_mov_b32 s40, s28
s_mul_i32 s43, s26, {7*1024}
s_mul_i32 s41, s40, {XB}
s_add_u32 s41, s41, s43
s_add_u32 s41, s41, {hex(OFF_XP)}
s_mov_b32 s42, s43
s_mov_b32 s44, 0""")
    x_dma(a, "s41", "s42")
    load_weights_natural(a, OFF_WA)
    a(f"""s_lshr_b32 s37, s30, 1
s_lshr_b32 s38, s31, 1
s_lshl_b32 s33, s37, 10
v_add_u32 v5, s33, v2
s_lshl_b32 s33, s38, 10
s_lshl_b32 s34, s32, 3
s_add_u32 s33, s33, s34
v_add_u32 v6, s33, v2
v_lshrrev_b32 v16, 2, v4
v_and_b32 v17, 1, v4
v_lshl_add_u32 v17, v16, 1, v17
v_lshlrev_b32 v17, 4, v17
v_lshl_add_u32 v17, v3, 7, v17
s_lshl_b32 s33, s37, 9
v_add_u32 v8, s33, v17
s_lshl_b32 s33, s38, 9
s_add_u32 s33, s33, s34
v_add_u32 v9, s33, v17
s_lshl_b32 s33, s26, 12
s_add_u32 s33, s33, {SX}
v_add_u32 v10, s33, v2
s_lshl_b32 s33, s32, 10
s_add_u32 s33, s33, {SX}
v_add_u32 v11, s33, v2
v_and_b32 v18, 3, v4
v_lshl_add_u32 v12, v16, 3, v18
s_lshl_b32 s33, s32, 2
v_add_u32 v12, s33, v12
v_lshlrev_b32 v18, 3, v3
v_sub_u32 v12, v12, v18
s_and_b32 s33, s27, 3
s_lshl_b32 s33, s33, 8
s_lshr_b32 s34, s27, 2
s_lshl_b32 s34, s34, 11
s_add_u32 s33, s33, s34
s_lshl_b32 s34, s32, 10
s_add_u32 s33, s33, s34
s_add_u32 s33, s33, 32768
v_lshlrev_b32 v13, 4, v4
v_lshl_add_u32 v13, v3, 2, v13
v_add_u32 v13, s33, v13
v_mov_b32 v16, {hex(OOB)}
v_cmp_eq_u32 vcc, 0, v0
v_cndmask_b32 v14, v16, 0, vcc
v_mov_b32 v15, 1
s_lshl_b32 s45, s27, 2
s_add_u32 s45, s45, {hex(OFF_FL + FL_P*4)}
s_lshl_b32 s50, s27, 1
s_add_u32 s50, s50, s32
s_lshl_b32 s50, s50, 10
s_mov_b32 s51, {NEGBIG}
s_waitcnt vmcnt(0)
s_barrier""")
    a("RT_loop:")
    a(f"""s_mul_i32 s46, s40, {XB}
s_add_u32 s46, s46, {hex(OFF_XN)}
s_add_u32 s47, s46, {14*1024}""")
    for kt in range(2):
        b = KEY + 14*kt; so = "s47" if kt else "s46"
        for p in range(3):
            a(f"buffer_load_dwordx4 v[{b+4*p}:{b+4*p+3}], v5, {WSR}, {so} offen offset:{p*1024}")
        a(f"buffer_load_dwordx2 v[{b+12}:{b+13}], v6, {WSR}, {so} offen")
    a(f"""v_add_u32 v7, s44, v2
s_xor_b32 s44, s44, {XB}
s_add_u32 s42, s44, s43
s_add_u32 s47, s40, {NT}
s_min_u32 s47, s47, 63
s_mul_i32 s41, s47, {XB}
s_add_u32 s41, s41, s43
s_add_u32 s41, s41, {hex(OFF_XP)}""")
    x_dma(a, "s41", "s42")
    gemm_segment(a, True, "v7")
    for t in range(2):
        for p in range(3):
            d0 = acc(2*p, t); d1 = acc(2*p+1, t)
            a(f"""v_cvt_pk_bf16_f32 v{d0}, v{d0}, v{d0+1}
v_cvt_pk_bf16_f32 v{d0+1}, v{d0+2}, v{d0+3}
v_cvt_pk_bf16_f32 v{d0+2}, v{d1}, v{d1+1}
v_cvt_pk_bf16_f32 v{d0+3}, v{d1+2}, v{d1+3}""")
        d0 = acc(6, t)
        a(f"v_cvt_pk_bf16_f32 v{d0}, v{d0}, v{d0+1}\nv_cvt_pk_bf16_f32 v{d0+1}, v{d0+2}, v{d0+3}")
    a("s_waitcnt vmcnt(7)")
    def smf(kt, t, p, keybase):
        d = Sa(kt, t); c = "0" if p == 0 else f"v[{d}:{d+3}]"
        if p < 3: a(f"v_mfma_f32_16x16x32_bf16 v[{d}:{d+3}], v[{keybase+4*p}:{keybase+4*p+3}], v[{acc(2*p,t)}:{acc(2*p,t)+3}], {c}")
        else: a(f"v_mfma_f32_16x16x16_bf16 v[{d}:{d+3}], v[{keybase+12}:{keybase+13}], v[{acc(6,t)}:{acc(6,t)+1}], {c}")
    for p in range(4):
        for kt in range(2):
            for t in range(2): smf(kt, t, p, KEY + 14*kt)
    for kt in range(2):
        for t in range(2):
            a(f"ds_write_b128 v10, v[{Sa(kt,t)}:{Sa(kt,t)+3}] offset:{(kt*2+t)*1024}")
    a(f"""s_lshl_b32 s46, s40, 13
s_add_u32 s46, s46, {hex(OFF_MX)}
s_cmp_gt_u32 s26, 1
s_waitcnt lgkmcnt(0)
s_barrier
s_cbranch_scc1 RT_poll""")
    X = KEY
    for kt in range(2):
        tm = [X + 4*kt, KEY+8, KEY+12, KEY+16]
        for w in range(4): a(f"ds_read_b128 v[{tm[w]}:{tm[w]+3}], v11 offset:{w*4096 + kt*2048}")
        a("s_waitcnt lgkmcnt(0)")
        for h2 in range(2):
            o = 2*h2
            a(f"""v_pk_add_f32 v[{tm[0]+o}:{tm[0]+o+1}], v[{tm[0]+o}:{tm[0]+o+1}], v[{tm[1]+o}:{tm[1]+o+1}]
v_pk_add_f32 v[{tm[2]+o}:{tm[2]+o+1}], v[{tm[2]+o}:{tm[2]+o+1}], v[{tm[3]+o}:{tm[3]+o+1}]
v_pk_add_f32 v[{tm[0]+o}:{tm[0]+o+1}], v[{tm[0]+o}:{tm[0]+o+1}], v[{tm[2]+o}:{tm[2]+o+1}]""")
    a(f"v_mov_b32 v{KEY+8}, s51")
    for s in range(8):
        a(f"v_cmp_le_i32 vcc, {s}, v12\nv_cndmask_b32 v{X+s}, v{KEY+8}, v{X+s}, vcc")
    MKT = RING
    a(f"""RT_poll:
buffer_load_dwordx4 v[{MKT}:{MKT+3}], v8, {WSR}, s46 offen sc1
buffer_load_dwordx4 v[{MKT+4}:{MKT+7}], v8, {WSR}, s46 offen offset:512 sc1
buffer_load_dwordx4 v[{MKT+8}:{MKT+11}], v8, {WSR}, s46 offen offset:1024 sc1
buffer_load_dwordx2 v[{MKT+12}:{MKT+13}], v9, {WSR}, s46 offen sc1
s_waitcnt vmcnt(0)
v_max3_u32 v{MKT+14}, v{MKT}, v{MKT+1}, v{MKT+2}
v_max3_u32 v{MKT+15}, v{MKT+3}, v{MKT+4}, v{MKT+5}
v_max3_u32 v{MKT+14}, v{MKT+6}, v{MKT+7}, v{MKT+14}
v_max3_u32 v{MKT+15}, v{MKT+8}, v{MKT+9}, v{MKT+15}
v_max3_u32 v{MKT+14}, v{MKT+10}, v{MKT+11}, v{MKT+14}
v_max3_u32 v{MKT+15}, v{MKT+12}, v{MKT+13}, v{MKT+15}
v_max_u32 v{MKT+14}, v{MKT+14}, v{MKT+15}
v_cmp_eq_u32 vcc, -1, v{MKT+14}
s_cbranch_vccz RT_got
s_sleep 4
s_branch RT_poll
RT_got:""")
    for p in range(4):
        for t in range(2): smf(2, t, p, MKT)
    a(f"""v_subrev_u32 v{MKT+14}, {SX}, v10
v_lshrrev_b32 v{MKT+14}, 1, v{MKT+14}
v_add_u32 v{MKT+14}, {SX2}, v{MKT+14}""")
    for t in range(2):
        a(f"ds_write_b64 v{MKT+14}, v[{Sa(2,t)}:{Sa(2,t)+1}] offset:{t*512}")
    a(f"""s_mul_i32 s47, s40, 40960
s_add_u32 s47, s47, {hex(OFF_PT)}
s_add_u32 s48, s47, s50
s_cmp_gt_u32 s26, 1
s_waitcnt lgkmcnt(0)
s_barrier
s_cbranch_scc1 RT_join
v_subrev_u32 v{MKT+14}, {SX}, v11
v_lshrrev_b32 v{MKT+14}, 1, v{MKT+14}
v_add_u32 v{MKT+14}, {SX2}, v{MKT+14}""")
    Y = KEY + 8; R = KEY + 16; TT = KEY + 17
    for w in range(4): a(f"ds_read_b64 v[{Y+2*w}:{Y+2*w+1}], v{MKT+14} offset:{w*2048}")
    a(f"""v_max3_f32 v{R}, v{X}, v{X+1}, v{X+2}
v_max3_f32 v{TT}, v{X+3}, v{X+4}, v{X+5}
v_max3_f32 v{R}, v{X+6}, v{X+7}, v{R}
s_waitcnt lgkmcnt(0)
v_pk_add_f32 v[{Y}:{Y+1}], v[{Y}:{Y+1}], v[{Y+2}:{Y+3}]
v_pk_add_f32 v[{Y+4}:{Y+5}], v[{Y+4}:{Y+5}], v[{Y+6}:{Y+7}]
v_pk_add_f32 v[{Y}:{Y+1}], v[{Y}:{Y+1}], v[{Y+4}:{Y+5}]
v_max3_f32 v{R}, v{R}, v{TT}, v{Y}
v_max_f32 v{R}, v{R}, v{Y+1}""")
    xrow_reduce(a, "v_max_f32", R, TT)
    for i in range(10): a(f"v_sub_f32 v{X+i}, v{X+i}, v{R}")
    for i in range(10): a(f"v_exp_f32 v{X+i}, v{X+i}")
    a(f"""v_pk_add_f32 v[{Y+2}:{Y+3}], v[{X}:{X+1}], v[{X+2}:{X+3}]
v_pk_add_f32 v[{Y+4}:{Y+5}], v[{X+4}:{X+5}], v[{X+6}:{X+7}]
v_pk_add_f32 v[{Y+2}:{Y+3}], v[{Y+2}:{Y+3}], v[{Y}:{Y+1}]
v_pk_add_f32 v[{Y+2}:{Y+3}], v[{Y+2}:{Y+3}], v[{Y+4}:{Y+5}]
v_add_f32 v{R}, v{Y+2}, v{Y+3}""")
    xrow_reduce(a, "v_add_f32", R, TT)
    a(f"v_rcp_f32 v{R}, v{R}")
    for i in range(5): a(f"v_pk_mul_f32 v[{X+2*i}:{X+2*i+1}], v[{X+2*i}:{X+2*i+1}], v[{R}:{R+1}] op_sel_hi:[1,0]")
    for i in range(5): a(f"v_cvt_pk_bf16_f32 v{X+i}, v{X+2*i}, v{X+2*i+1}")
    a(f"""buffer_store_dwordx4 v[{X}:{X+3}], v2, {WSR}, s48 offen sc1
buffer_store_dword v{X+4}, v13, {WSR}, s47 offen sc1
s_waitcnt vmcnt(0)
RT_join:
s_lshl_b32 s46, s40, 8
s_add_u32 s46, s46, s45
s_barrier
buffer_store_dword v15, v14, {WSR}, s46 offen sc1
s_add_u32 s40, s40, {NT}
s_cmp_lt_u32 s40, 64
s_cbranch_scc1 RT_loop
s_endpgm""")

def flag_wait(a, tag, smask, voff, vdst, soff, sleep=4):
    a(f"""s_cmp_lg_u32 s26, 0
s_cbranch_scc1 {tag}_b
{tag}:
buffer_load_dword v{vdst}, v{voff}, {WSR}, {soff} offen sc1
s_waitcnt vmcnt(0)
v_cmp_eq_u32 vcc, 0, v{vdst}
s_and_b64 vcc, vcc, {smask}
s_cbranch_vccz {tag}_b
s_sleep {sleep}
s_branch {tag}
{tag}_b:
s_barrier""")

def role_F(a):
    ZF = 16; UF = 144; PF = 176
    a("R_F:")
    srd_load(a, "out", AUX); srd_fin(a, "out", AUX)
    a(f"""s_mul_i32 s28, s27, 37
s_lshr_b32 s28, s28, 8
s_mul_i32 s29, s28, 7
s_sub_u32 s29, s27, s29
s_lshr_b32 s30, s26, 1
s_lshl_b32 s31, s29, 1
s_add_u32 s30, s30, s31
s_and_b32 s32, s26, 1
v_lshlrev_b32 v5, 2, v1
v_lshlrev_b32 v6, 2, v4
v_lshrrev_b32 v7, 2, v4
v_and_b32 v8, 3, v4
v_lshl_add_u32 v7, v7, 3, v8
s_lshl_b32 s33, s32, 2
v_add_u32 v7, s33, v7
v_mul_u32_u24 v7, 896, v7
v_lshl_add_u32 v7, v3, 4, v7
s_lshl_b32 s33, s30, 6
v_add_u32 v7, s33, v7
s_mov_b32 s50, 0x0000ffff
s_mov_b32 s51, 0x00010000
s_mov_b32 s52, 0xffff0000
s_lshl_b32 s53, 3, s31
s_mov_b32 s40, s28
s_mov_b32 s54, 0xffff0000
s_waitcnt lgkmcnt(0)""")
    a("RF_loop:")
    a(f"s_lshl_b32 s41, s40, 8\ns_add_u32 s41, s41, {hex(OFF_FL)}")
    flag_wait(a, "RF_w1", "s[50:51]", 5, 9, "s41", 16)
    a(f"""s_mul_i32 s42, s40, {16*28}
s_lshl_b32 s33, s30, 1
s_add_u32 s42, s42, s33
s_lshl_b32 s42, s42, 10
s_add_u32 s42, s42, {hex(OFF_Z)}""")
    for h in range(16):
        for c in range(2):
            b = ZF + (h*2+c)*4
            a(f"buffer_load_dwordx4 v[{b}:{b+3}], v2, {WSR}, s42 offen offset:{c*1024} sc1")
        if h < 15: a(f"s_add_u32 s42, s42, {28*1024}")
    a(f"""s_lshl_b32 s43, s40, 1
s_add_u32 s43, s43, s32
s_lshl_b32 s44, s43, 6
s_add_u32 s44, s44, {hex(OFF_OMG)}
s_mul_i32 s43, s43, 14
s_add_u32 s43, s43, s30
s_lshl_b32 s43, s43, 10
s_add_u32 s43, s43, {hex(OFF_GA)}
buffer_load_dwordx4 v[{PF}:{PF+3}], v2, {WSR}, s43 offen sc1
buffer_load_dword v{PF+4}, v6, {WSR}, s44 offen sc1""")
    flag_wait(a, "RF_w2", "s[52:53]", 5, 9, "s41", 2)
    a(f"""s_mul_i32 s45, s40, 40960
s_lshl_b32 s33, s32, 10
s_add_u32 s45, s45, s33
s_add_u32 s45, s45, {hex(OFF_PT)}
s_mul_i32 s46, s40, {4*28}
s_lshl_b32 s33, s30, 1
s_add_u32 s46, s46, s33
s_lshl_b32 s46, s46, 10
s_add_u32 s46, s46, {hex(OFF_U)}""")
    for h in range(20):
        d = 4*h
        a(f"buffer_load_dwordx4 a[{d}:{d+3}], v2, {WSR}, s45 offen offset:{(h & 1)*2048} sc1")
        if h & 1: a("s_add_u32 s45, s45, 4096")
    for hg in range(4):
        for c in range(2):
            b = UF + (hg*2+c)*4
            a(f"buffer_load_dwordx4 v[{b}:{b+3}], v2, {WSR}, s46 offen offset:{c*1024} sc1")
        if hg < 3: a(f"s_add_u32 s46, s46, {28*1024}")
    A0 = PF + 8
    for h in range(20):
        if h < 16: a(f"s_waitcnt vmcnt({27-h})")
        elif h == 16: a("s_waitcnt vmcnt(0)")
        for c in range(2):
            b = ZF + (h*2+c)*4 if h < 16 else UF + ((h-16)*2+c)*4
            d = A0 + 4*c
            a(f"v_mfma_f32_16x16x32_bf16 v[{d}:{d+3}], v[{b}:{b+3}], a[{4*h}:{4*h+3}], {'0' if h == 0 else f'v[{d}:{d+3}]'}")
    T0 = A0 + 8
    a(f"s_mul_i32 s47, s40, {32*896}")
    for i in range(4):
        a(f"""v_cvt_pk_bf16_f32 v{T0}, v{A0+2*i}, v{A0+2*i+1}
v_lshlrev_b32 v{T0+2}, 16, v{T0}
v_and_b32 v{T0+3}, s54, v{T0}
v_mul_f32 v{T0+2}, v{T0+2}, v{PF+4}
v_mul_f32 v{T0+3}, v{T0+3}, v{PF+4}
v_cvt_pk_bf16_f32 v{T0}, v{T0+2}, v{T0+3}
v_lshlrev_b32 v{T0+2}, 16, v{T0}
v_and_b32 v{T0+3}, s54, v{T0}
v_lshlrev_b32 v{T0+4}, 16, v{PF+i}
v_and_b32 v{T0+5}, s54, v{PF+i}
v_add_f32 v{T0+2}, v{T0+2}, v{T0+4}
v_add_f32 v{T0+3}, v{T0+3}, v{T0+5}
v_cvt_pk_bf16_f32 v{PF+i}, v{T0+2}, v{T0+3}""")
    a(f"""buffer_store_dwordx4 v[{PF}:{PF+3}], v7, {AUXR}, s47 offen
s_add_u32 s40, s40, 9
s_cmp_lt_u32 s40, 64
s_cbranch_scc1 RF_loop
s_endpgm""")

def role_L(a):
    from k1 import VM
    DB = 16; DBR = f"s[{DB}:{DB+3}]"
    ACCL = 16; PK = 32; VF = 40; KVA = 48; PQ = 64; TM = 96; G = 120; CI = 124
    xf = lambda t, ks: f"a[{(t*14+ks)*4}:{(t*14+ks)*4+3}]"
    def wb(j, blk):
        b = 4*blk
        return f"a[{112+b}:{115+b}]" if j % 2 == 0 else f"v[{128+b}:{131+b}]"
    al = lambda tt, t: ACCL + (tt*2+t)*4
    a("R_L:")
    srd_load(a, "gw", AUX); srd_fin(a, "gw", AUX); srd_load(a, "dbg", DB); srd_fin(a, "dbg", DB)
    a(f"""s_mul_i32 s40, s27, {XB}
s_add_u32 s40, s40, {hex(OFF_XN)}
s_mul_i32 s41, s26, {12*28*1024}
s_add_u32 s41, s41, {hex(OFF_WL)}
v_lshlrev_b32 v5, 4, v3
v_lshlrev_b32 v6, 2, v1
v_cmp_eq_u32 vcc, 12, v4
v_cndmask_b32 v{CI}, 0, 1.0, vcc
v_cndmask_b32 v{CI+1}, 0, 1.0, vcc
v_cndmask_b32 v{CI+2}, 0, 1.0, vcc
v_cndmask_b32 v{CI+3}, 0, 1.0, vcc
v_cmp_gt_u32 vcc, 3, v3
v_cndmask_b32 v7, 0, -1, vcc
s_mov_b32 s50, {f32(LOG2E)}
s_mov_b32 s51, {f32(LOG2E)}
s_mov_b32 s52, {f32(1e-6)}
s_mov_b32 s53, {f32(1e-6)}
s_mov_b32 s54, 0xffff0000
s_lshl_b32 s42, s26, 14
s_add_u32 s42, s42, {hex(OFF_KV)}
s_waitcnt lgkmcnt(0)""")
    vm = VM(a)
    for i in range(28):
        vm.op(f"buffer_load_dwordx4 a[{4*i}:{4*i+3}], v2, {WSR}, s40 offen offset:{(i%4)*1024}", "x" if i == 27 else None)
        if i % 4 == 3: a("s_add_u32 s40, s40, 4096")
    for ks in range(14):
        vm.op(f"buffer_load_dwordx4 v[{PQ+4*ks}:{PQ+4*ks+3}], v5, {AUXR}, 0 offen offset:{64*ks}", "gw" if ks == 13 else None)
    def wload(j, blk):
        vm.op(f"buffer_load_dwordx4 {wb(j, blk)}, v2, {WSR}, s41 offen offset:{(blk%4)*1024}", ("w", j, blk))
        if blk % 4 == 3: a("s_add_u32 s41, s41, 4096")
    for blk in range(28): wload(0, blk)
    vm.wait("gw")
    for ks in range(14):
        for t in range(2):
            d = ACCL + 4*t
            a(f"v_mfma_f32_16x16x32_bf16 v[{d}:{d+3}], v[{PQ+4*ks}:{PQ+4*ks+3}], {xf(t, ks)}, {'0' if ks == 0 else f'v[{d}:{d+3}]'}")
    for blk in range(28): wload(1, blk)
    a(f"""v_cvt_pk_bf16_f32 v{TM}, v{ACCL}, v{ACCL+4}
v_lshlrev_b32 v{G}, 16, v{TM}
v_and_b32 v{G+1}, s54, v{TM}
v_pk_mul_f32 v[{G}:{G+1}], v[{G}:{G+1}], s[50:51] neg_lo:[1,0] neg_hi:[1,0]
v_exp_f32 v{G}, v{G}
v_exp_f32 v{G+1}, v{G+1}
v_pk_add_f32 v[{G}:{G+1}], v[{G}:{G+1}], 1.0 op_sel_hi:[1,0]
v_rcp_f32 v{G}, v{G}
v_rcp_f32 v{G+1}, v{G+1}
v_cvt_pk_bf16_f32 v{TM}, v{G}, v{G+1}
v_lshlrev_b32 v{G}, 16, v{TM}
v_and_b32 v{G+1}, s54, v{TM}
v_sub_f32 v{TM}, 1.0, v{G}
v_sub_f32 v{TM+1}, 1.0, v{G+1}
v_cvt_pk_bf16_f32 v{TM}, v{TM}, v{TM+1}
v_lshlrev_b32 v{G+2}, 16, v{TM}
v_and_b32 v{G+3}, s54, v{TM}
v_mov_b32 v{TM}, {hex(OOB)}
v_cmp_gt_u32 vcc, 16, v0
v_cndmask_b32 v8, v{TM}, v6, vcc
v_cmp_eq_u32 vcc, 0, v0
v_cndmask_b32 v9, v{TM}, 0, vcc
s_lshl_b32 s43, s27, 7
s_add_u32 s43, s43, {hex(OFF_OMG)}""")
    vm.op(f"buffer_store_dword v{G+2}, v8, {WSR}, s43 offen sc1")
    vm.op(f"buffer_store_dword v{G+3}, v8, {WSR}, s43 offen offset:64 sc1")
    def phi(dst, x0):
        a(f"""v_cvt_pk_bf16_f32 v{TM}, v{x0}, v{x0+1}
v_lshlrev_b32 v{TM+2}, 16, v{TM}
v_and_b32 v{TM+3}, s54, v{TM}
v_pk_mul_f32 v[{TM+4}:{TM+5}], v[{TM+2}:{TM+3}], s[50:51]
v_max_f32 v{TM+2}, 0, v{TM+2}
v_min_f32 v{TM+4}, 0, v{TM+4}
v_min_f32 v{TM+5}, 0, v{TM+5}
v_exp_f32 v{TM+4}, v{TM+4}
v_exp_f32 v{TM+5}, v{TM+5}
v_max_f32 v{TM+3}, 0, v{TM+3}
v_pk_add_f32 v[{TM+2}:{TM+3}], v[{TM+2}:{TM+3}], v[{TM+4}:{TM+5}]
v_pk_add_f32 v[{TM+2}:{TM+3}], v[{TM+2}:{TM+3}], s[52:53]
v_cvt_pk_bf16_f32 v{dst}, v{TM+2}, v{TM+3}""")
    for j in range(12):
        hl, part = divmod(j, 3)
        for blk in range(28):
            tt, ks = divmod(blk, 14)
            vm.wait(("w", j, blk))
            for t in range(2):
                d = al(tt, t)
                c = f"v[{d}:{d+3}]" if ks else (f"v[{CI}:{CI+3}]" if (part == 2 and tt == 1) else "0")
                A, B = (wb(j, blk), xf(t, ks)) if part == 0 else (xf(t, ks), wb(j, blk))
                a(f"v_mfma_f32_16x16x32_bf16 v[{d}:{d+3}], {A}, {B}, {c}")
            if j + 2 < 12: wload(j+2, blk)
        for tt in range(2):
            for t in range(2):
                for k in range(2):
                    src = al(tt, t) + 2*k
                    if part == 0: phi(PQ + (hl*2+t)*4 + 2*tt + k, src)
                    elif part == 1: phi(PK + 4*tt + 2*t + k, src)
                    else: a(f"v_cvt_pk_bf16_f32 v{VF + 4*tt + 2*t + k}, v{src}, v{src+1}")
        if part == 2:
            for td in range(2):
                for te in range(2):
                    d = KVA + (td*2+te)*4
                    a(f"v_mfma_f32_16x16x32_bf16 v[{d}:{d+3}], v[{PK+4*td}:{PK+4*td+3}], v[{VF+4*te}:{VF+4*te+3}], 0")
            for i in range(16):
                vm.op(f"buffer_atomic_add_f32 v{KVA+i}, v6, {WSR}, s42 offen offset:{i*256}")
            a("s_add_u32 s42, s42, 4096")
    wo = lambda slot, h: (f"a[{128+64*slot+4*h}:{131+64*slot+4*h}]" if slot < 2 else f"v[{192+4*h}:{195+4*h}]")
    a(f"""s_mul_i32 s41, s26, {7*16*1024}
s_add_u32 s41, s41, {hex(OFF_WO)}
s_waitcnt vmcnt(0)
s_barrier
s_cmp_lg_u32 s26, 0
s_cbranch_scc1 RL_noadd
v_mov_b32 v{TM}, 1
buffer_atomic_add v{TM}, v9, {DBR}, 0 offen offset:8 sc1
RL_noadd:""")
    vm = VM(a)
    def woload(c):
        for h in range(16):
            vm.op(f"buffer_load_dwordx4 {wo(c % 3, h)}, v2, {WSR}, s41 offen offset:{(h%4)*1024}", ("wo", c, h))
            if h % 4 == 3: a("s_add_u32 s41, s41, 4096")
    for c in range(3): woload(c)
    a(f"""s_cmp_lg_u32 s26, 0
s_cbranch_scc1 RL_sync
v_mov_b32 v{TM+1}, 0
RL_spin:
buffer_load_dword v{TM}, v{TM+1}, {DBR}, 0 offen offset:8 sc1
s_waitcnt vmcnt(0)
v_readfirstlane_b32 s33, v{TM}
s_cmp_ge_u32 s33, 64
s_cbranch_scc1 RL_sync
s_sleep 8
s_branch RL_spin
RL_sync:
s_barrier
s_sub_u32 s42, s42, 16384""")
    KR = 128
    for hl in range(4):
        for i in range(16):
            vm.op(f"buffer_load_dword v{KR+16*hl+i}, v6, {WSR}, s42 offen offset:{i*256} sc1", ("kv", hl) if i == 15 else None)
        a("s_add_u32 s42, s42, 4096")
    a(f"s_lshl_b32 s33, s26, 13\nv_add_u32 v10, s33, v2")
    KF = 32; ZF = 40; N0 = 16
    for hl in range(4):
        vm.wait(("kv", hl))
        k = lambda td, te, r: KR + 16*hl + (td*2+te)*4 + r
        for te in range(2):
            for td in range(2):
                for e in range(2):
                    a(f"v_cvt_pk_bf16_f32 v{KF+4*te+2*td+e}, v{k(td,te,2*e)}, v{k(td,te,2*e+1)}")
            a(f"v_and_b32 v{KF+4*te+2}, v7, v{KF+4*te+2}\nv_and_b32 v{KF+4*te+3}, v7, v{KF+4*te+3}")
        for i in range(4): a(f"v_mov_b32_dpp v{ZF+i}, v{KF+4+i} row_newbcast:12 {DPM}")
        for t in range(2):
            pq = f"v[{PQ+(hl*2+t)*4}:{PQ+(hl*2+t)*4+3}]"
            a(f"""v_mfma_f32_16x16x32_bf16 v[{N0+8}:{N0+11}], v[{ZF}:{ZF+3}], {pq}, 0
v_mfma_f32_16x16x32_bf16 v[{N0}:{N0+3}], v[{KF}:{KF+3}], {pq}, 0
v_mfma_f32_16x16x32_bf16 v[{N0+4}:{N0+7}], v[{KF+4}:{KF+7}], {pq}, 0
v_cvt_pk_bf16_f32 v{TM}, v{N0+8}, v{N0+8}
v_lshlrev_b32 v{TM}, 16, v{TM}
v_add_f32 v{TM}, s52, v{TM}
v_cvt_pk_bf16_f32 v{TM}, v{TM}, v{TM}
v_lshlrev_b32 v{TM}, 16, v{TM}
v_rcp_f32 v{TM}, v{TM}""")
            for i in range(4):
                a(f"""v_cvt_pk_bf16_f32 v{TM+4}, v{N0+2*i}, v{N0+2*i+1}
v_lshlrev_b32 v{TM+2}, 16, v{TM+4}
v_and_b32 v{TM+3}, s54, v{TM+4}
v_pk_mul_f32 v[{TM+2}:{TM+3}], v[{TM+2}:{TM+3}], v[{TM}:{TM+1}] op_sel_hi:[1,0]
v_cvt_pk_bf16_f32 v{44+i}, v{TM+2}, v{TM+3}""")
            a(f"ds_write_b128 v10, v[44:47] offset:{(hl*2+t)*1024}")
    a("s_waitcnt lgkmcnt(0)\ns_barrier")
    for i in range(32):
        a(f"ds_read_b128 a[{4*i}:{4*i+3}], v2 offset:{i*1024}")
        if i % 8 == 7: a("s_waitcnt lgkmcnt(0)")
    a(f"s_mul_i32 s44, s26, 7\ns_mul_i32 s45, s27, {28*1024}\ns_add_u32 s45, s45, {hex(OFF_GA)}")
    for c in range(7):
        for h in range(16):
            vm.wait(("wo", c, h))
            for t in range(2):
                d = ACCL + 4*t
                a(f"v_mfma_f32_16x16x32_bf16 v[{d}:{d+3}], {wo(c % 3, h)}, a[{(h*2+t)*4}:{(h*2+t)*4+3}], {'0' if h == 0 else f'v[{d}:{d+3}]'}")
        if c + 3 < 7: woload(c+3)
        a(f"""s_add_u32 s33, s44, {c}
s_lshr_b32 s46, s33, 1
s_lshl_b32 s46, s46, 10
s_and_b32 s33, s33, 1
s_lshl_b32 s33, s33, 3
s_add_u32 s46, s46, s33
s_add_u32 s46, s46, s45
s_add_u32 s47, s46, {14*1024}""")
        for t in range(2):
            o = 32 + 2*t + 4*(c & 1)
            for i in range(2):
                a(f"""v_cvt_pk_bf16_f32 v{TM+4}, v{ACCL+4*t+2*i}, v{ACCL+4*t+2*i+1}
v_lshlrev_b32 v{TM+2}, 16, v{TM+4}
v_and_b32 v{TM+3}, s54, v{TM+4}
v_mul_f32 v{TM+2}, v{TM+2}, v{G+t}
v_mul_f32 v{TM+3}, v{TM+3}, v{G+t}
v_cvt_pk_bf16_f32 v{o+i}, v{TM+2}, v{TM+3}""")
            vm.op(f"buffer_store_dwordx2 v[{o}:{o+1}], v2, {WSR}, s{46+t} offen sc1")
    a(f"""s_lshl_b32 s46, s27, 8
s_add_u32 s46, s46, {hex(OFF_FL + FL_G*4)}
v_mov_b32 v{TM}, 1
s_waitcnt vmcnt(0)
s_barrier
buffer_store_dword v{TM}, v9, {WSR}, s46 offen sc1
s_endpgm""")
```

```python
from gen_common import *

class VM:
    def __init__(self, a): self.a = a; self.n = 0; self.tags = {}
    def op(self, text, tag=None):
        self.a(text); self.n += 1
        if tag is not None: self.tags[tag] = self.n
    def wait(self, tag):
        k = min(self.n - self.tags[tag], 63)
        self.a(f"s_waitcnt vmcnt({k})")

LOG2E = 1.4426950408889634
import struct
def f32(x): return hex(struct.unpack("<I", struct.pack("<f", x))[0])

import os
OPT = dict(x.split('=') for x in os.environ.get('OPT','').split(',') if x)
def gen_k1(name, prof=False):
    a = Asm(); header(a, name)
    WS, X, SA, SB, M0 = 4, 8, 12, 16, 20
    a("s_cmp_ge_u32 s2, 256\ns_cbranch_scc1 K1_exit")
    if prof: a("s_memrealtime s[98:99]")
    srd_load(a, "ws", WS); srd_load(a, "x", X); srd_load(a, "mem0", M0)
    a("""s_and_b32 s24, s2, 7
s_lshr_b32 s25, s2, 3
v_lshrrev_b32 v1, 6, v0
v_and_b32 v2, 63, v0
v_readfirstlane_b32 s26, v1
v_lshlrev_b32 v3, 4, v0
v_lshlrev_b32 v4, 4, v2
v_lshrrev_b32 v5, 4, v2
v_and_b32 v6, 15, v2""")
    srd_fin(a, "ws", WS); srd_fin(a, "x", X); srd_fin(a, "mem0", M0)
    a("s_waitcnt lgkmcnt(0)")
    a(f"""s_cmp_ge_u32 s2, 208
s_cbranch_scc1 K1_nofill
s_cmp_eq_u32 s2, 0
s_cbranch_scc1 K1_filled
s_cmp_eq_u32 s2, 64
s_cbranch_scc1 K1_filled
v_mov_b32 v8, -1
v_mov_b32 v9, -1
v_mov_b32 v10, -1
v_mov_b32 v11, -1
s_lshl_b32 s27, s2, 13
s_add_u32 s27, s27, {hex(OFF_MF)}
s_add_u32 s28, s27, 4096
buffer_store_dwordx4 v[8:11], v3, s[{WS}:{WS+3}], s27 offen
buffer_store_dwordx4 v[8:11], v3, s[{WS}:{WS+3}], s28 offen
s_branch K1_filled
K1_nofill:
s_cmp_ge_u32 s2, 232
s_cbranch_scc1 K1_nozero
v_mov_b32 v8, 0
v_mov_b32 v9, 0
v_mov_b32 v10, 0
v_mov_b32 v11, 0
s_sub_u32 s27, s2, 208
s_lshl_b32 s27, s27, 12
s_add_u32 s27, s27, {hex(OFF_FL)}
buffer_store_dwordx4 v[8:11], v3, s[{WS}:{WS+3}], s27 offen
s_branch K1_filled
K1_nozero:
s_cmp_ge_u32 s2, 234
s_cbranch_scc1 K1_filled
v_and_b32 v8, 7, v0
v_mul_u32_u24 v8, 896, v8
v_lshrrev_b32 v9, 3, v0
v_lshl_add_u32 v8, v9, 4, v8
buffer_load_dwordx4 v[12:15], v8, s[{M0}:{M0+3}], 0 offen
buffer_load_dwordx4 v[16:19], v8, s[{M0}:{M0+3}], 0 offen offset:512
s_sub_u32 s27, s2, 232
s_mul_i32 s27, s27, {hex(OFF_MX-OFF_MF)}
s_add_u32 s27, s27, {hex(OFF_MF)}
s_add_u32 s28, s27, 4096
s_waitcnt vmcnt(0)
buffer_store_dwordx4 v[12:15], v3, s[{WS}:{WS+3}], s27 offen
buffer_store_dwordx4 v[16:19], v3, s[{WS}:{WS+3}], s28 offen
K1_filled:""")
    a("""v_lshrrev_b32 v8, 2, v6
v_lshlrev_b32 v8, 3, v8
v_and_b32 v9, 3, v6
v_add_u32 v8, v8, v9
v_mul_u32_u24 v8, 896, v8
v_lshrrev_b32 v9, 1, v5
v_lshl_add_u32 v8, v9, 5, v8
v_and_b32 v9, 1, v5
v_lshl_add_u32 v20, v9, 3, v8
v_lshl_add_u32 v19, v9, 3, v20
s_lshr_b32 s27, s2, 2
s_lshl_b32 s27, s27, 5
s_bfe_u32 s28, s2, 0x10001
s_lshl_b32 s28, s28, 2
s_add_u32 s27, s27, s28
s_mul_i32 s27, s27, 896
s_and_b32 s28, s2, 1
s_mul_i32 s28, s28, 7
s_add_u32 s29, s28, s26
s_add_u32 s30, s26, 4
s_min_u32 s30, s30, 6
s_add_u32 s30, s28, s30
s_lshl_b32 s31, s29, 6
s_add_u32 s31, s31, s27
s_lshl_b32 s32, s30, 6
s_add_u32 s32, s32, s27
s_lshr_b32 s33, s2, 1
s_mul_i32 s33, s33, 14
s_add_u32 s29, s29, s33
s_add_u32 s30, s30, s33
s_lshl_b32 s29, s29, 10
s_lshl_b32 s30, s30, 10""")
    a(f"s_add_u32 s62, s29, {hex(OFF_XN)}\ns_add_u32 s63, s30, {hex(OFF_XN)}")
    a(f"s_add_u32 s29, s29, {hex(OFF_XP)}\ns_add_u32 s30, s30, {hex(OFF_XP)}")
    def xp_loads(vm):
        vm.op(f"buffer_load_dwordx4 v[24:27], v19, s[{X}:{X+3}], s31 offen")
        vm.op(f"buffer_load_dwordx4 v[28:31], v19, s[{X}:{X+3}], s32 offen", "xp")
    def xp_store(vm):
        vm.wait("xp")
        vm.op(f"buffer_store_dwordx4 v[24:27], v4, s[{WS}:{WS+3}], s62 offen")
        vm.op(f"buffer_store_dwordx4 v[28:31], v4, s[{WS}:{WS+3}], s63 offen")
        a("""v_permlane16_swap_b32 v24, v26
v_permlane16_swap_b32 v25, v27
v_permlane16_swap_b32 v28, v30
v_permlane16_swap_b32 v29, v31
v_swap_b32 v25, v26
v_swap_b32 v29, v30""")
        vm.op(f"buffer_store_dwordx4 v[24:27], v4, s[{WS}:{WS+3}], s29 offen")
        vm.op(f"buffer_store_dwordx4 v[28:31], v4, s[{WS}:{WS+3}], s30 offen")
    a("s_cmp_ge_u32 s25, 28\ns_cbranch_scc1 K1_misc")
    a("""s_mul_i32 s34, s25, 37
s_lshr_b32 s34, s34, 8
s_mul_i32 s35, s34, 7
s_sub_u32 s35, s25, s35
s_lshl_b32 s34, s34, 3
s_add_u32 s34, s34, s24
s_and_b32 s36, s34, 15""")
    a("""v_lshrrev_b32 v8, 5, v2
v_and_b32 v9, 31, v2
s_lshl_b32 s37, s36, 9""")
    for i in range(8):
        mrow = 16*((2*i) >> 3) + 8*(i & 1) + 4*((i >> 1) & 1); nrow = 8*(i >> 1) + 2*(i & 1)
        a(f"""v_or_b32 v10, {2*i}, v8
v_xor_b32 v10, v10, v9
v_lshlrev_b32 v10, 4, v10
v_lshl_add_u32 v10, v8, 13, v10
v_add_u32 v{64+i}, {mrow*8192}, v10
v_add_u32 v{72+i}, {nrow*8192}, v10""")
    a("v_lshlrev_b32 v11, 9, v6\ns_lshl_b32 s38, s26, 14")
    for es in range(8):
        a(f"""v_or_b32 v10, {4*es}, v5
v_xor_b32 v10, v10, v6
v_lshl_add_u32 v{80+es}, v10, 4, v11""")
    for i in range(4):
        a(f"""s_add_u32 s38, s26, {4*i}
s_min_u32 s38, s38, 13
s_lshl_b32 s{40+2*i}, s38, 18
s_add_u32 s{40+2*i}, s{40+2*i}, s37
s_add_u32 s{41+2*i}, s{40+2*i}, 16384""")
    a("s_lshl_b32 s48, s26, 14")
    LAND = lambda i, tt, j: (f"a[{128+((i-2)*16+tt*8+j)*4}:{131+((i-2)*16+tt*8+j)*4}]")
    def a_dma(vm, i, only=None):
        for tt in range(2):
            for j in range(8):
                if only is not None and (tt, j) != only: continue
                tag = ("A", i) if (tt, j) == (1, 7) else None
                if i < 2:
                    a(f"s_add_u32 m0, s48, {(i & 1)*65536 + tt*8192 + j*1024}")
                    vm.op(f"buffer_load_dwordx4 v{64+j}, s[{SA}:{SA+3}], s{40+2*i+tt} offen lds", tag)
                else:
                    vm.op(f"buffer_load_dwordx4 {LAND(i, tt, j)}, v{64+j}, s[{SA}:{SA+3}], s{40+2*i+tt} offen", tag)
    RG = 96
    def compute(vm, scale):
        for es in range(8): a(f"v_add_u32 v{80+es}, s48, v{80+es}")
        a("v_add_u32 v88, s48, v4")
        for i in range(4):
            if i == 3:
                a(f"s_cmp_ge_u32 s26, 2\ns_cbranch_scc1 K1_end")
            if i < 2: vm.wait(("A", i))
            if prof: a(f"s_memrealtime s[{82+2*i}:{83+2*i}]")
            acc = 192 + 32*(i & 1)
            def rd(es):
                for tt in range(2):
                    b = RG + ((es & 3)*2 + tt)*4
                    a(f"ds_read_b128 v[{b}:{b+3}], v{80+es} offset:{tt*8192}")
            rd(0); rd(1); rd(2)
            for es in range(8):
                if es + 3 < 8: rd(es+3)
                a(f"s_waitcnt lgkmcnt({2*min(3, 7-es)})")
                for tt in range(2):
                    b = RG + ((es & 3)*2 + tt)*4
                    for t in range(4):
                        d = acc + (tt*4+t)*4
                        c = "0" if es == 0 else f"v[{d}:{d+3}]"
                        a(f"v_mfma_f32_16x16x32_bf16 v[{d}:{d+3}], v[{b}:{b+3}], a[{(t*8+es)*4}:{(t*8+es)*4+3}], {c}")
                        if i == 0 and t & 1: a_dma(vm, 2 + (es >> 2), ((es >> 1) & 1, (es & 1)*4 + tt*2 + (t >> 1)))
            if i < 2:
                vm.wait(("A", i+2))
                for tt in range(2):
                    for j in range(8):
                        a(f"ds_write_b128 v88, {LAND(i+2, tt, j)} offset:{tt*8192 + j*1024}")
                a("v_xor_b32 v88, 0x10000, v88")
            for es in range(8): a(f"v_xor_b32 v{80+es}, 0x10000, v{80+es}")
            a(f"s_add_u32 s50, s26, {4*i}\ns_lshl_b32 s50, s50, 10\ns_add_u32 s50, s50, s39")
            for t in range(4):
                o = 32 + 4*t
                for tt in range(2):
                    d = acc + (tt*4+t)*4
                    if scale:
                        a(f"v_pk_mul_f32 v[{d}:{d+1}], v[{d}:{d+1}], s[52:53]\nv_pk_mul_f32 v[{d+2}:{d+3}], v[{d+2}:{d+3}], s[52:53]")
                    a(f"v_cvt_pk_bf16_f32 v{o+2*tt}, v{d}, v{d+1}\nv_cvt_pk_bf16_f32 v{o+2*tt+1}, v{d+2}, v{d+3}")
                vm.op(f"buffer_store_dwordx4 v[{o}:{o+3}], v4, s[{WS}:{WS+3}], s50 offen")
                if t < 3: a(f"s_add_u32 s50, s50, {14*1024}")
            if i < 2: a("s_waitcnt lgkmcnt(0)")
        a("s_endpgm")
    a(f"""s_mul_i32 s39, s34, 28
s_lshl_b32 s38, s35, 2
s_add_u32 s39, s39, s38
s_mul_i32 s39, s39, {14*1024}""")
    assert OFF_WA == 0 and OFF_WB == 16*WSZ
    a("s_cmp_ge_u32 s34, 16\ns_cbranch_scc1 K1_bmat")
    srd_load(a, "Wq", SA); srd_load(a, "Wk", SB); srd_fin(a, "Wq", SA); srd_fin(a, "Wk", SB)
    a(f"""s_lshl_b32 s54, s35, 19
s_add_u32 s54, s54, s37
s_lshr_b32 s55, s26, 1
s_lshl_b32 s55, s55, 18
s_add_u32 s54, s54, s55
s_and_b32 s55, s26, 1
s_lshl_b32 s55, s55, 15
s_add_u32 s54, s54, s55
s_lshl_b32 s55, s26, 13
s_mov_b32 s52, {f32(LOG2E/16)}
s_mov_b32 s53, {f32(LOG2E/16)}
s_waitcnt lgkmcnt(0)""")
    vm = VM(a)
    for j in range(8):
        a(f"s_add_u32 m0, s55, {131072 + j*1024}")
        vm.op(f"buffer_load_dwordx4 v{72+j}, s[{SB}:{SB+3}], s54 offen lds", "B" if j == 7 else None)
    a_dma(vm, 0); xp_loads(vm); a_dma(vm, 1)
    for es in range(8): a(f"v_add_u32 v{72+es}, 0x20000, v{80+es}")
    vm.wait("B"); a("s_barrier")
    for t in range(4):
        for es in range(8):
            b = (t*8+es)*4
            a(f"ds_read_b128 a[{b}:{b+3}], v{72+es} offset:{t*8192}")
        a("s_waitcnt lgkmcnt(0)")
    if prof: a("s_memrealtime s[80:81]")
    xp_store(vm)
    compute(vm, True)
    a("K1_bmat:")
    srd_load(a, "Wv", SA); srd_load(a, "Wo", SB); srd_fin(a, "Wv", SA); srd_fin(a, "Wo", SB)
    RS = 128
    a(f"""v_lshrrev_b32 v8, 3, v0
v_and_b32 v9, 7, v0
v_mul_u32_u24 v22, 896, v8
v_lshl_add_u32 v22, v9, 4, v22
v_lshlrev_b32 v10, 1, v8
v_and_b32 v10, 4, v10
v_xor_b32 v9, v9, v10
v_lshlrev_b32 v23, 7, v8
v_lshl_add_u32 v23, v9, 4, v23
v_add_u32 v23, 0x20000, v23
s_mul_i32 s54, s36, {256*896}
s_lshl_b32 s55, s35, 7
s_add_u32 s54, s54, s55
s_waitcnt lgkmcnt(0)""")
    vm = VM(a)
    for j in range(8):
        vm.op(f"buffer_load_dwordx4 v[{192+4*j}:{195+4*j}], v22, s[{SB}:{SB+3}], s54 offen", ("B", j))
        if j < 7: a(f"s_add_u32 s54, s54, {32*896}")
    a_dma(vm, 0); xp_loads(vm); a_dma(vm, 1)
    for j in range(8):
        vm.wait(("B", j))
        a(f"ds_write_b128 v23, v[{192+4*j}:{195+4*j}] offset:{j*32*RS}")
    a(f"""v_lshrrev_b32 v8, 2, v6
v_lshlrev_b32 v10, 1, v8
v_and_b32 v10, 4, v10
v_lshl_add_u32 v8, v5, 3, v8
v_lshlrev_b32 v8, 7, v8
v_and_b32 v9, 3, v6
v_or_b32 v9, v9, v10
v_lshl_add_u32 v23, v9, 4, v8
v_add_u32 v23, 0x20000, v23
v_xor_b32 v22, 64, v23
s_waitcnt lgkmcnt(0)
s_barrier""")
    for t in range(4):
        for es in range(8):
            b = (t*8+es)*4
            for hh in range(2):
                a(f"ds_read_b64_tr_b16 a[{b+2*hh}:{b+2*hh+1}], v{22 if t >> 1 else 23} offset:{(32*es+4*hh)*RS + 8*(t&1)}")
        a("s_waitcnt lgkmcnt(0)")
    if prof: a("s_memrealtime s[80:81]")
    xp_store(vm)
    compute(vm, False)
    a("K1_misc:")
    a("""s_sub_u32 s34, s25, 28
s_lshl_b32 s34, s34, 3
s_add_u32 s34, s34, s24""")
    a("""v_lshrrev_b32 v8, 2, v6
v_lshl_add_u32 v40, v5, 3, v8
v_and_b32 v41, 3, v6
s_cmp_ge_u32 s34, 28
s_cbranch_scc1 K1_wo""")
    srd_load(a, "wqkv", SB); srd_fin(a, "wqkv", SB)
    RL = 1360
    a(f"""s_lshr_b32 s35, s34, 1
s_and_b32 s36, s34, 1
s_lshl_b32 s37, s35, 5
s_lshl_b32 s38, s26, 3
s_add_u32 s37, s37, s38
s_mul_i32 s37, s37, 2688
s_mul_i32 s39, s36, 1344
s_add_u32 s37, s37, s39
s_mul_i32 s38, s38, {RL}
v_add_u32 v42, s38, v4
s_waitcnt lgkmcnt(0)""")
    vm = VM(a); xp_loads(vm)
    for rr in range(8):
        vm.op(f"buffer_load_dwordx4 v[{64+8*rr}:{67+8*rr}], v4, s[{SB}:{SB+3}], s37 offen")
        vm.op(f"buffer_load_dwordx4 v[{68+8*rr}:{71+8*rr}], v4, s[{SB}:{SB+3}], s37 offen offset:1024", ("R", rr))
        if rr < 7: a("s_add_u32 s37, s37, 2688")
    xp_store(vm)
    a("v_cmp_gt_u32 vcc, 20, v2\ns_mov_b64 s[60:61], vcc")
    for rr in range(8):
        vm.wait(("R", rr))
        a(f"ds_write_b128 v42, v[{64+8*rr}:{67+8*rr}] offset:{rr*RL}")
        a("s_mov_b64 exec, s[60:61]")
        a(f"ds_write_b128 v42, v[{68+8*rr}:{71+8*rr}] offset:{rr*RL+1024}")
        a("s_mov_b64 exec, -1")
    a(f"""v_mul_u32_u24 v43, {RL}, v40
v_lshl_add_u32 v43, v41, 4, v43
s_mul_i32 s38, s26, {6*56}
v_add_u32 v43, s38, v43
v_cmp_gt_u32 vcc, 12, v6
v_cndmask_b32 v44, 0, -1, vcc
s_mul_i32 s40, s36, 24
s_mul_i32 s41, s26, 6
s_add_u32 s40, s40, s41
s_waitcnt lgkmcnt(0)
s_barrier""")
    for j in range(6):
        for tile in range(2):
            o = 64 + (j*2+tile)*4
            for hh in range(2):
                a(f"ds_read_b64_tr_b16 v[{o+2*hh}:{o+2*hh+1}], v43 offset:{4*hh*RL + j*56 + 8*tile}")
    a("s_waitcnt lgkmcnt(0)")
    for j in range(6):
        a(f"""s_add_u32 s41, s40, {j}
s_and_b32 s42, s41, 15
s_lshr_b32 s41, s41, 4
s_mul_i32 s42, s42, 3
s_add_u32 s41, s41, s42
s_mul_i32 s41, s41, 28
s_add_u32 s41, s41, s35
s_lshl_b32 s41, s41, 10
s_add_u32 s41, s41, {hex(OFF_WL)}
s_add_u32 s42, s41, {14*1024}""")
        o = 64 + j*8
        for k in range(4): a(f"v_and_b32 v{o+4+k}, v{o+4+k}, v44")
        a(f"buffer_store_dwordx4 v[{o}:{o+3}], v4, s[{WS}:{WS+3}], s41 offen")
        a(f"buffer_store_dwordx4 v[{o+4}:{o+7}], v4, s[{WS}:{WS+3}], s42 offen")
    a("s_endpgm")
    a("K1_wo:")
    srd_load(a, "wo", SB); srd_fin(a, "wo", SB)
    RO = 912
    a(f"""s_sub_u32 s35, s34, 28
s_lshl_b32 s35, s35, 2
s_add_u32 s35, s35, s26
s_mul_i32 s37, s35, {28*896}
s_mul_i32 s38, s26, {32*RO}
v_add_u32 v42, s38, v4
s_waitcnt lgkmcnt(0)""")
    vm = VM(a); xp_loads(vm)
    for rr in range(28):
        imm = (rr % 4) * 896
        vm.op(f"buffer_load_dwordx4 v[{64+4*rr}:{67+4*rr}], v4, s[{SB}:{SB+3}], s37 offen offset:{imm}", ("R", rr))
        if rr % 4 == 3: a(f"s_add_u32 s37, s37, {4*896}")
    xp_store(vm)
    a("v_cmp_gt_u32 vcc, 56, v2\ns_and_saveexec_b64 s[60:61], vcc")
    for rr in range(28):
        vm.wait(("R", rr))
        a(f"ds_write_b128 v42, v[{64+4*rr}:{67+4*rr}] offset:{rr*RO}")
    a(f"""s_mov_b64 exec, s[60:61]
v_mul_u32_u24 v43, {RO}, v40
v_lshl_add_u32 v43, v41, 4, v43
v_add_u32 v43, s38, v43
v_cmp_gt_u32 vcc, 3, v5
v_cndmask_b32 v44, 0, -1, vcc
s_lshl_b32 s41, s35, 10
s_add_u32 s41, s41, {hex(OFF_WO)}
s_waitcnt lgkmcnt(0)""")
    for ct in range(28):
        o = 64 + 4*ct
        for hh in range(2):
            a(f"ds_read_b64_tr_b16 v[{o+2*hh}:{o+2*hh+1}], v43 offset:{4*hh*RO + (32*(ct>>1)+4*(ct&1))*2}")
        if ct % 7 == 6: a("s_waitcnt lgkmcnt(0)")
    for ct in range(28):
        o = 64 + 4*ct
        a(f"v_and_b32 v{o+2}, v{o+2}, v44\nv_and_b32 v{o+3}, v{o+3}, v44")
        a(f"buffer_store_dwordx4 v[{o}:{o+3}], v4, s[{WS}:{WS+3}], s41 offen")
        a(f"s_add_u32 s41, s41, {16*1024}")
    a("K1_end:\ns_endpgm\nK1_exit:\ns_nop 0\ns_endpgm ")
    L = []
    for l in a.lines:
        if l.startswith("buffer_load") and "s[4:7]" not in l and OPT.get("k1ld", "nt"):
            l = l[:-4] + " " + OPT.get("k1ld", "nt") + " lds" if l.endswith(" lds") else l + " " + OPT.get("k1ld", "nt")
        if l.startswith("buffer_store"): l += " " + OPT.get("k1st", "").replace("+", " ")
        if prof and l == "s_endpgm" and L[-1] != "s_nop 0":
            L += ["s_memrealtime s[94:95]", "s_waitcnt vmcnt(0)", "s_memrealtime s[96:97]", "s_waitcnt lgkmcnt(0)", "s_lshl_b32 s95, s2, 2", "s_add_u32 s95, s95, s26", "s_lshl_b32 s95, s95, 5", "s_add_u32 s95, s95, 0x4200000", "s_waitcnt lgkmcnt(0)",
                  "v_mov_b32 v16, s98", "v_mov_b32 v17, s96", "v_mov_b32 v18, s80", "v_mov_b32 v19, s82", "v_mov_b32 v20, s84", "v_mov_b32 v21, s86", "v_mov_b32 v22, s88", "v_mov_b32 v23, s94",
                  "s_mov_b64 exec, 1", "buffer_store_dwordx4 v[16:19], off, s[4:7], s95", "buffer_store_dwordx4 v[20:23], off, s[4:7], s95 offset:16"]
        L.append(l)
    a.lines = L
    return a.finish() + kd(name, 512, 256)
K1_LDS = 160*1024
```

```python
from gen_common import *
from k1 import f32, LOG2E, OPT
WS, X, AUX = 4, 8, 12
WSR = f"s[{WS}:{WS+3}]"; XR = f"s[{X}:{X+3}]"; AUXR = f"s[{AUX}:{AUX+3}]"
NZ = 3; NT = 3

def wreg(u, n=4):
    b = 4*u
    return f"a[{b}:{b+n-1}]" if u < 64 else f"v[{120+b-256}:{120+b-256+n-1}]"

def lane_consts(a):
    a("""v_lshrrev_b32 v1, 6, v0
v_readfirstlane_b32 s26, v1
v_and_b32 v1, 63, v0
v_lshlrev_b32 v2, 4, v1
v_lshrrev_b32 v3, 4, v1
v_and_b32 v4, 15, v1""")

def tile_map(a):
    a("""s_and_b32 s32, s26, 1
s_mul_i32 s31, s26, 7
s_add_u32 s30, s31, s32
s_xor_b32 s33, s32, 1
s_mul_i32 s33, s33, 6
s_add_u32 s31, s31, s33""")

def load_weights_natural(a, off_img):
    a(f"""s_mul_i32 s34, s27, 28
s_add_u32 s35, s34, s31
s_add_u32 s34, s34, s30
s_mul_i32 s34, s34, {14*1024}
s_mul_i32 s35, s35, {14*1024}
s_add_u32 s34, s34, {hex(off_img)}
s_add_u32 s35, s35, {hex(off_img)}""")
    for u in range(98):
        s = "s34" if u < 84 else "s35"; j = u if u < 84 else u - 84
        a(f"buffer_load_dwordx4 {wreg(u)}, v2, {WSR}, {s} offen offset:{(j % 4)*1024}")
        if j % 4 == 3: a(f"s_add_u32 {s}, {s}, 4096")

XB = 28*1024
def x_dma(a, sseg, sbuf):
    for j in range(7):
        if j % 4 == 0:
            a(f"s_add_u32 s36, {sseg}, {j*1024}\ns_add_u32 m0, {sbuf}, {j*1024}")
        a(f"buffer_load_dwordx4 v2, {WSR}, s36 offen offset:{(j % 4)*1024} lds")

ACC = 32
RING = 16
def acc(lt, t): return ACC + (lt*2+t)*4
def gemm_segment(a, w_is_A, vaddr):
    def rd(ks):
        for t in range(2):
            b = RING + ((ks & 1)*2 + t)*4
            a(f"ds_read_b128 v[{b}:{b+3}], {vaddr} offset:{(t*14+ks)*1024}")
    rd(0)
    for ks in range(14):
        if ks < 13: rd(ks+1)
        a(f"s_waitcnt lgkmcnt({2 if ks < 13 else 0})")
        for lt in range(7):
            for t in range(2):
                d = acc(lt, t); b = RING + ((ks & 1)*2 + t)*4
                c = "0" if ks == 0 else f"v[{d}:{d+3}]"
                w = wreg(lt*14+ks); xx = f"v[{b}:{b+3}]"
                a(f"v_mfma_f32_16x16x32_bf16 v[{d}:{d+3}], {w if w_is_A else xx}, {xx if w_is_A else w}, {c}")

def role_Z(a):
    a("R_Z:")
    tile_map(a)
    a(f"""s_mov_b32 s40, s28
s_mul_i32 s43, s26, {7*1024}
s_mul_i32 s41, s40, {XB}
s_add_u32 s41, s41, s43
s_add_u32 s41, s41, {hex(OFF_XP)}
s_mov_b32 s42, s43
s_mov_b32 s44, 0""")
    x_dma(a, "s41", "s42")
    load_weights_natural(a, OFF_WB)
    a(f"""v_mov_b32 v5, 1
s_lshr_b32 s45, s27, 2
s_lshl_b32 s45, s45, 10
s_and_b32 s46, s27, 3
s_lshl_b32 s46, s46, 2
s_add_u32 s45, s45, s46
s_add_u32 s45, s45, {hex(OFF_ZF)}
v_mov_b32 v6, 0
s_waitcnt vmcnt(0)""")
    a("RZ_loop:")
    a("s_waitcnt vmcnt(7)\ns_barrier")
    a(f"""s_sub_u32 s46, s40, {2*NZ}
s_cmp_lt_i32 s46, 0
s_cbranch_scc1 RZ_noflag
s_cmp_lg_u32 s26, 0
s_cbranch_scc1 RZ_noflag
s_lshl_b32 s46, s46, 4
s_add_u32 s46, s46, s45
s_mov_b64 exec, 1
buffer_store_dword v5, v6, {WSR}, s46 offen sc1
s_mov_b64 exec, -1
RZ_noflag:""")
    a(f"""v_add_u32 v7, s44, v2
s_xor_b32 s44, s44, {XB}
s_add_u32 s42, s44, s43
s_add_u32 s47, s40, {NZ}
s_min_u32 s47, s47, 63
s_mul_i32 s41, s47, {XB}
s_add_u32 s41, s41, s43
s_add_u32 s41, s41, {hex(OFF_XP)}""")
    x_dma(a, "s41", "s42")
    gemm_segment(a, False, "v7")
    a(f"""s_lshl_b32 s47, s40, 4
s_add_u32 s47, s47, s27
s_mul_i32 s47, s47, 28
s_add_u32 s48, s47, s31
s_add_u32 s47, s47, s30
s_lshl_b32 s47, s47, 10
s_lshl_b32 s48, s48, 10
s_add_u32 s47, s47, {hex(OFF_Z)}
s_add_u32 s48, s48, {hex(OFF_Z)}
s_add_u32 s49, s47, 4096""")
    for lt in range(7):
        d0 = acc(lt, 0); d1 = acc(lt, 1)
        a(f"""v_cvt_pk_bf16_f32 v{d0}, v{d0}, v{d0+1}
v_cvt_pk_bf16_f32 v{d0+1}, v{d0+2}, v{d0+3}
v_cvt_pk_bf16_f32 v{d0+2}, v{d1}, v{d1+1}
v_cvt_pk_bf16_f32 v{d0+3}, v{d1+2}, v{d1+3}""")
        s, o = ("s47", lt*1024) if lt < 4 else (("s49", (lt-4)*1024) if lt < 6 else ("s48", 0))
        a(f"buffer_store_dwordx4 v[{d0}:{d0+3}], v2, {WSR}, {s} offen offset:{o} sc1{' nt' if OPT.get('zsnt') else ''}")
    a(f"""s_add_u32 s40, s40, {NZ}
s_cmp_lt_u32 s40, 64
s_cbranch_scc1 RZ_loop
s_waitcnt vmcnt(0)
s_barrier
s_cmp_lg_u32 s26, 0
s_cbranch_scc1 M_end
s_mov_b64 exec, 1
s_sub_u32 s46, s40, {2*NZ}
s_lshl_b32 s46, s46, 4
s_add_u32 s46, s46, s45
buffer_store_dword v5, v6, {WSR}, s46 offen sc1
s_add_u32 s46, s46, {NZ*16}
buffer_store_dword v5, v6, {WSR}, s46 offen sc1
s_endpgm""")
```

```python
from main_roles import *
import team, asmlib
MAIN_LDS = 160*1024
def gen_main(name, roles, force=None, prof=False):
    a = Asm(); header(a, name)
    a("s_cmp_ge_u32 s2, 256\ns_cbranch_scc1 M_end")
    srd_load(a, "ws", WS); srd_load(a, "x", X)
    if prof: a("s_memrealtime s[98:99]")
    a("s_and_b32 s24, s2, 7\ns_lshr_b32 s25, s2, 3")
    lane_consts(a)
    srd_fin(a, "ws", WS); srd_fin(a, "x", X)
    tgt = lambda r: f"R_{r}" if r in roles else "M_end"
    a(f"""s_waitcnt lgkmcnt(0)
s_cmp_lg_u32 s24, 0
s_cbranch_scc1 M_worker
s_mov_b32 s27, s25
s_cmp_lt_u32 s25, 16
s_cbranch_scc1 {tgt('A')}
s_sub_u32 s27, s25, 16
s_cmp_lt_u32 s25, 30
s_cbranch_scc1 {tgt('B')}
s_branch {tgt('H')}
M_worker:
s_cmp_eq_u32 s24, 7
s_cbranch_scc0 M_w1
s_add_u32 s27, s25, 32
s_cmp_lt_u32 s27, 63
s_cbranch_scc1 {tgt('F')}
s_endpgm
M_w1:
s_cmp_lt_u32 s24, 5
s_cbranch_scc1 M_w2
s_sub_u32 s27, s24, 5
s_lshl_b32 s27, s27, 5
s_add_u32 s27, s27, s25
s_branch {tgt('L')}
M_w2:
s_sub_u32 s29, s24, 1
s_cmp_lt_u32 s25, 24
s_cbranch_scc1 M_w3
s_lshl_b32 s27, s29, 3
s_add_u32 s27, s27, s25
s_sub_u32 s27, s27, 24
s_branch {tgt('F')}
M_w3:
s_sub_u32 s30, s25, 12
s_cmp_lt_u32 s25, 12
s_cselect_b32 s30, s25, s30
s_mul_i32 s31, s30, 43
s_lshr_b32 s31, s31, 7
s_mul_i32 s28, s31, 3
s_sub_u32 s28, s30, s28
s_lshl_b32 s27, s29, 2
s_add_u32 s27, s27, s31
s_cmp_lt_u32 s25, 12
s_cbranch_scc1 {tgt('Z')}
s_branch {tgt('T')}
M_end:
s_endpgm""")
    if "A" in roles: team.role_A(a, force, prof)
    if "B" in roles: team.role_B(a, force, prof)
    if "H" in roles: team.role_H(a)
    if "Z" in roles: role_Z(a)
    if "T" in roles:
        import workers; workers.role_T(a)
    if "L" in roles:
        import workers; workers.role_L(a)
    if "F" in roles:
        import workers; workers.role_F(a)
    if prof:
        L = []
        for l in a.lines:
            if l == "s_endpgm" and L and L[-1] != "M_end:":
                L += ["s_memrealtime s[96:97]", "s_lshl_b32 s95, s2, 4", "s_add_u32 s95, s95, 0x4100000", "s_waitcnt lgkmcnt(0)",
                      "v_mov_b32 v16, s98", "v_mov_b32 v17, s96", "s_mov_b64 exec, 1",
                      f"buffer_store_dwordx2 v[16:17], off, {WSR}, s95"]
            L.append(l)
        a.lines = L
    asmlib.MFMA_STATES = 3
    txt = a.finish()
    asmlib.MFMA_STATES = 1
    import re
    txt = re.sub(r"\b(M_\w+|R_\w+|R[ABHZTLF]_\w+)\b", lambda m: f"{name}_{m.group(1)}", txt)
    return txt + kd(name, 512, 256)
```

```python
from main_roles import *
import os
OPT = dict(x.split('=') for x in os.environ.get('OPT','').split(',') if x)
DBG = AUX
NTEAM = 30
MB = 0
TB = 7168
TW = 6400; PS = 1568; GS = 392
SB = TB + 4*TW
RB = 7168
WLB = RB + 4096

def team_common(a, tagp):
    srd_load(a, "dbg", DBG); srd_fin(a, "dbg", DBG)
    a(f"""s_getreg_b32 s33, hwreg(HW_REG_XCC_ID)
s_and_b32 s33, s33, 15
s_lshl_b32 s33, 1, s33
s_waitcnt lgkmcnt(0)
s_cmp_lg_u32 s26, 0
s_cbranch_scc1 {tagp}_reg_done
s_mov_b64 exec, 1
v_mov_b32 v5, s33
v_mov_b32 v6, 0
buffer_atomic_or v5, v6, {AUXR}, 0 offen sc0 sc1
v_mov_b32 v7, 1
s_waitcnt vmcnt(0)
buffer_atomic_add v7, v6, {AUXR}, 0 offen offset:4 sc1
s_mov_b64 exec, -1
{tagp}_reg_done:""")
    for j in range(7):
        a(f"""s_lshl_b32 s33, s26, 1
s_add_u32 s33, s33, {j}
s_sub_u32 s34, s33, 7
s_cmp_ge_u32 s33, 7
s_cselect_b32 s33, s34, s33
s_lshl_b32 s{50+j}, s33, 10""")

def team_mode(a, tagp, force=None):
    a(f"""v_mov_b32 v12, 0
{tagp}_mode:
buffer_load_dword v13, v12, {AUXR}, 0 offen offset:4 sc1
s_waitcnt vmcnt(0)
v_readfirstlane_b32 s33, v13
s_cmp_lt_u32 s33, {NTEAM}
s_cbranch_scc1 {tagp}_mode
buffer_load_dword v13, v12, {AUXR}, 0 offen sc1
s_waitcnt vmcnt(0)
v_readfirstlane_b32 s33, v13
s_bcnt1_i32_b32 s33, s33
s_cmp_eq_u32 s33, 1
s_cselect_b32 s49, 1, 0""")
    if force is not None: a(f"s_mov_b32 s49, {force}")

def poll_m(a, tag, M, depth=1, gap=1):
    rnd = f"""buffer_load_dwordx4 v[{M}:{M+3}], v2, {WSR}, s44 offen sc1
buffer_load_dwordx4 v[{M+4}:{M+7}], v2, {WSR}, s45 offen sc1"""
    for k in range(depth):
        a(rnd)
        if k < depth-1: a(f"s_sleep {gap}")
    a(f"""{tag}:
s_waitcnt vmcnt({2*depth-1})
v_max3_u32 v14, v{M}, v{M+1}, v{M+2}
s_waitcnt vmcnt({2*depth-2})
v_max3_u32 v15, v{M+4}, v{M+5}, v{M+6}
v_max3_u32 v14, v{M+3}, v{M+7}, v14
v_max_u32 v14, v14, v15
v_cmp_eq_u32 vcc, -1, v14
{rnd}
s_cbranch_vccnz {tag}
ds_write_b128 v12, v[{M}:{M+3}] offset:{MB}
ds_write_b128 v13, v[{M+4}:{M+7}] offset:{MB}""")

HP = 7168
HM = 7168 + 64
def hint_wait(a, tag, voff, vdst, soff, imm, depth=3, delay=0):
    ld = f"buffer_load_dword v{vdst}, v{voff}, {WSR}, {soff} offen offset:{imm} sc1"
    a(f"s_cmp_eq_u32 s49, 0\ns_cbranch_scc1 {tag}_done")
    if OPT.get("h1"): a(f"s_cmp_lg_u32 s26, 0\ns_cbranch_scc1 {tag}_bar")
    for k in range(depth):
        a(ld)
        if k < depth-1: a("s_nop 15")
    a(f"""{tag}:
s_waitcnt vmcnt({depth-1})
v_cmp_eq_u32 vcc, -1, v{vdst}
{ld}
s_cbranch_vccnz {tag}""")
    for k in range(delay // 64): a("s_nop 15")
    if delay % 64: a(f"s_nop {delay % 64 // 4 - 1}")
    if OPT.get("h1"): a(f"{tag}_bar:\ns_barrier")
    a(f"{tag}_done:")
def hint_send(a, soff, imm, reg):
    a(f"""s_mov_b64 exec, 1
buffer_store_dword v{reg}, off, {WSR}, {soff} offset:{imm}
s_mov_b64 exec, -1""")

def xstamp(a, on, reg):
    if on == 4: a(f"s_memtime s[{reg}:{reg+1}]")
def stamp(a, on, idx, sreg=60):
    if on == 4:
        a(f"s_memtime s[{sreg+2*idx}:{sreg+2*idx+1}]")
        if idx == 3: a("s_memrealtime s[74:75]")
    if on == 2: a(f"s_memtime s[{sreg+2*idx}:{sreg+2*idx+1}]")
    if on == 3: a(f"s_memrealtime s[{sreg+2*idx}:{sreg+2*idx+1}]")
    if on == 1 and idx == 3: a(f"s_memrealtime s[{sreg+2*idx}:{sreg+2*idx+1}]\ns_memtime s[{sreg}:{sreg+1}]")

PLOG = 140*1024
def prof_log(a, M):
    a(f"""s_waitcnt lgkmcnt(0)
s_lshl_b32 s33, s26, 6
s_add_u32 s33, s33, s40
s_lshl_b32 s33, s33, 4
s_add_u32 s33, s33, {PLOG}
v_mov_b32 v{M}, s60
v_mov_b32 v{M+1}, s62
v_mov_b32 v{M+2}, s64
v_mov_b32 v{M+3}, s66
v_mov_b32 v{M+4}, s33
ds_write_b128 v{M+4}, v[{M}:{M+3}]
v_mov_b32 v{M}, s74
v_mov_b32 v{M+1}, s76
v_mov_b32 v{M+2}, s78
ds_write_b96 v{M+4}, v[{M}:{M+2}] offset:4096""")
def prof_dump(a, M, cu):
    a(f"""s_lshl_b32 s33, s26, 10
s_add_u32 s33, s33, {PLOG}
v_add_u32 v{M+4}, s33, v2
s_waitcnt lgkmcnt(0)
ds_read_b128 v[{M}:{M+3}], v{M+4}
s_add_u32 s33, s27, {cu}
s_lshl_b32 s33, s33, 2
s_add_u32 s33, s33, s26
s_lshl_b32 s33, s33, 10
s_add_u32 s33, s33, {hex(0x4000000)}
s_waitcnt lgkmcnt(0)
buffer_store_dwordx4 v[{M}:{M+3}], v2, {WSR}, s33 offen
ds_read_b128 v[{M+8}:{M+11}], v{M+4} offset:4096
s_add_u32 s33, s33, 0x80000
s_waitcnt lgkmcnt(0)
buffer_store_dwordx4 v[{M+8}:{M+11}], v2, {WSR}, s33 offen""")

OOB = 0x40000000
DPM = "row_mask:0xf bank_mask"
def role_A(a, force=None, prof=False):
    M = 16; T = 44; XK = 72; S = 100; MK = 112
    a("R_A:")
    team_common(a, "RA")
    tile_map(a)
    a(f"""s_mul_i32 s34, s27, 28
s_add_u32 s35, s34, s31
s_add_u32 s34, s34, s30
s_mul_i32 s34, s34, {14*1024}
s_mul_i32 s35, s35, {14*1024}""")
    for lt in range(7):
        for j in range(7):
            base = "s34" if lt < 6 else "s35"
            a(f"s_lshl_b32 s36, s{50+j}, 1\ns_add_u32 s36, s36, {base}")
            if 0 < lt < 6: a(f"s_add_u32 s36, s36, {lt*14*1024}")
            for e in range(2):
                a(f"buffer_load_dwordx4 {wreg(lt*14+2*j+e)}, v2, {WSR}, s36 offen offset:{e*1024}")
    a(f"""s_lshr_b32 s37, s30, 1
s_lshr_b32 s38, s31, 1
v_and_b32 v12, 7, v4
v_lshrrev_b32 v13, 3, v4
v_lshrrev_b32 v14, 2, v4
v_and_b32 v15, 3, v4
v_and_b32 v16, 1, v4
v_lshl_add_u32 v16, v14, 1, v16
v_lshlrev_b32 v16, 4, v16
v_lshl_add_u32 v16, v3, 7, v16
s_lshl_b32 s33, s37, 9
v_add_u32 v20, s33, v16
s_lshl_b32 s33, s38, 9
s_lshl_b32 s34, s32, 3
s_add_u32 s33, s33, s34
v_add_u32 v21, s33, v16
s_mul_i32 s33, s26, {TW}
s_add_u32 s33, s33, {TB}
v_mul_u32_u24 v5, {GS}, v14
v_lshl_add_u32 v5, v15, 5, v5
v_lshl_add_u32 v5, v3, 3, v5
v_add_u32 v5, s33, v5
v_mul_u32_u24 v6, {GS}, v3
v_lshl_add_u32 v6, v14, 5, v6
v_lshl_add_u32 v6, v15, 3, v6
v_add_u32 v6, s33, v6
v_lshl_add_u32 v7, v3, 1, v13
v_add_u32 v7, v7, v12
v_and_b32 v7, 7, v7
v_lshl_add_u32 v7, v12, 3, v7
v_lshlrev_b32 v7, 4, v7
s_lshl_b32 s33, s26, 10
s_add_u32 s33, s33, {SB}
v_add_u32 v7, s33, v7
v_lshrrev_b32 v17, 3, v1
v_and_b32 v18, 7, v1
v_add_u32 v8, v17, v18
v_and_b32 v8, 7, v8
v_lshl_add_u32 v8, v17, 3, v8
v_lshlrev_b32 v8, 4, v8
v_add_u32 v8, {SB}, v8
s_lshl_b32 s33, s38, 10
s_lshl_b32 s34, s32, 3
s_add_u32 s33, s33, s34
v_add_u32 v11, s33, v2
s_lshl_b32 s33, s37, 10
v_add_u32 v10, s33, v2""")
    a(f"""v_lshrrev_b32 v19, 1, v18
v_and_b32 v22, 1, v18
s_and_b32 s33, s27, 3
s_lshr_b32 s34, s27, 2
s_mul_i32 s34, s34, 2560
v_lshlrev_b32 v25, 4, v17
v_add_u32 v25, s34, v25
s_lshl_b32 s35, s33, 9
v_lshl_add_u32 v9, v19, 7, v25
v_lshl_add_u32 v9, v22, 3, v9
v_add_u32 v9, s35, v9
s_lshl_b32 s35, s33, 7
s_add_u32 s35, s35, 2048
v_lshl_add_u32 v27, v19, 2, v25
v_add_u32 v27, s35, v27
v_mov_b32 v28, {hex(OOB)}
v_cmp_eq_u32 vcc, 0, v22
v_cndmask_b32 v0, v28, v27, vcc
v_mov_b32 v28, 0x44444444
v_mov_b32 v29, 0xeeeeeeee
v_cmp_eq_u32 vcc, 0, v13
v_cndmask_b32 v1, v29, v28, vcc
v_mov_b32 v3, v20
v_mov_b32 v4, v21
s_mov_b32 s40, 0
s_mov_b32 s41, {hex(OFF_MF)}
s_mov_b32 s42, {hex(OFF_PM)}
s_mov_b32 s43, {hex(OFF_XN)}""")
    def xk_loads():
        a(f"s_add_u32 s33, s43, {14*1024}")
        for kt in range(2):
            b = XK + 14*kt; so = "s33" if kt else "s43"
            for p in range(3):
                a(f"buffer_load_dwordx4 v[{b+4*p}:{b+4*p+3}], v10, {WSR}, {so} offen offset:{p*1024}")
            a(f"buffer_load_dwordx2 v[{b+12}:{b+13}], v11, {WSR}, {so} offen")
    xk_loads()
    team_mode(a, "RA", force)
    for i in range(28): a(f"v_mov_b32 v{T+i}, 0")
    a("RA_loop:")
    a("""s_add_u32 s44, s41, s50
s_add_u32 s45, s41, s51
v_add_u32 v12, s50, v2
v_add_u32 v13, s51, v2""")
    if int(OPT.get("asleep", 0)): a(f"s_sleep {OPT['asleep']}")
    if OPT.get("hint"):
        a(f"""v_lshrrev_b32 v{M+8}, 2, v2
v_min_u32 v{M+8}, 220, v{M+8}
{f"v_and_b32 v{M+8}, 0xf0, v{M+8}" + chr(10) + f"v_or_b32 v{M+8}, {4*int(OPT['hw'])}, v{M+8}" if OPT.get("hw") else ""}
s_add_u32 s33, s41, 4096
s_cmp_eq_u32 s40, 0
s_cbranch_scc1 RA_hm_done""")
        hint_wait(a, "RA_hm", M+8, M+9, "s33", HM-4096, int(OPT.get("hd", 3)), int(OPT.get("mdelay", 0)))
    poll_m(a, "RA_poll", M, int(OPT.get("ad", 1)), int(OPT.get("gap", 1)))
    stamp(a, prof, 0)
    def sm(lt, j):
        a(f"v_smfmac_f32_16x16x64_bf16 v[{T+4*lt}:{T+4*lt+3}], v[{M+4*j}:{M+4*j+3}], {wreg(lt*14+2*j, 8)}, v1")
    tmp = [MK+7, 12, 13, 14, 15]
    for lt in range(7):
        sm(lt, 0)
        if lt < 5: a(f"v_add_u32 v{tmp[lt]}, s{52+lt}, v2")
    a("s_waitcnt lgkmcnt(0)\ns_barrier")
    xstamp(a, prof, 76)
    rd = [f"ds_read_b128 v[{M+4*j}:{M+4*j+3}], v{tmp[j-2]} offset:{MB}" for j in range(2, 7)]
    rd += [f"ds_read_b128 v[{MK}:{MK+3}], v3 offset:{MB}", f"ds_read_b128 v[{MK+4}:{MK+7}], v3 offset:{MB+512}"]
    a(rd[0]); a(rd[1])
    for lt in range(7):
        sm(lt, 1)
        if lt < 5: a(rd[2+lt])
    def cvt(lt, k): a(f"v_cvt_pk_bf16_f32 v{14+k}, v{T+4*lt+2*k}, v{T+4*lt+2*k+1}")
    def wr(lt): a(f"ds_write_b64 v5, v[14:15] offset:{(lt>>1)*PS + (lt&1)*128}")
    def tr(p, hh): a(f"ds_read_b64_tr_b16 v[{T+8*p+2*hh}:{T+8*p+2*hh+1}], v6 offset:{p*PS + hh*128}")
    def dense(p, kt):
        d = S + 4*kt; c = "0" if p == 0 else f"v[{d}:{d+3}]"
        if p < 3:
            key = f"v[{XK+14*kt+4*p}:{XK+14*kt+4*p+3}]" if kt < 2 else f"v[{MK+4*(p&1)}:{MK+4*(p&1)+3}]"
            a(f"v_mfma_f32_16x16x32_bf16 v[{d}:{d+3}], {key}, v[{T+8*p}:{T+8*p+3}], {c}")
        else:
            key = f"v[{XK+14*kt+12}:{XK+14*kt+13}]" if kt < 2 else f"v[{MK+4}:{MK+5}]"
            a(f"v_mfma_f32_16x16x16_bf16 v[{d}:{d+3}], {key}, v[{T+24}:{T+25}], {c}")
    for lt in range(7):
        for jj, j in enumerate(range(2, 7)):
            if lt == 0: a(f"s_waitcnt lgkmcnt({6-jj})")
            sm(lt, j)
            s = lt - 1
            if lt in (3, 5) and jj < 2: tr((lt-3) >> 1, jj)
            if lt in (4, 6) and jj == 1:
                a("s_waitcnt lgkmcnt(1)")
                for kt in range(3): dense((lt-4) >> 1, kt)
                if lt == 4: a(f"ds_read_b128 v[{MK}:{MK+3}], v3 offset:{MB+1024}")
                else: a(f"ds_read_b64 v[{MK+4}:{MK+5}], v4 offset:{MB}")
            if s >= 0 and jj == 2: cvt(s, 0)
            if s >= 0 and jj == 3: cvt(s, 1)
            if s >= 0 and jj == 4: wr(s)
    stamp(a, prof, 1)
    tr(2, 0); tr(2, 1)
    cvt(6, 0); cvt(6, 1); wr(6); tr(3, 0)
    a("s_waitcnt lgkmcnt(2)")
    for kt in range(3): dense(2, kt)
    a("s_waitcnt lgkmcnt(0)")
    for kt in range(3): dense(3, kt)
    for r in range(4): a(f"v_add_f32_dpp v{S+r}, v{S+r}, v{S+r} row_ror:8 {DPM}:0x3")
    for r in range(4): a(f"v_add_f32_dpp v{S+r}, v{S+4+r}, v{S+4+r} row_ror:8 {DPM}:0xc")
    a(f"""v_add_f32_dpp v{S+8}, v{S+8}, v{S+8} row_ror:8 {DPM}:0x3
ds_write_b128 v7, v[{S}:{S+3}]
v_add_f32_dpp v{S+8}, v{S+9}, v{S+9} row_ror:8 {DPM}:0xc
ds_write_b32 v7, v{S+8} offset:4096""")
    xstamp(a, prof, 78)
    a(f"""s_add_u32 s40, s40, 1
s_add_u32 s41, s41, 8192
s_add_u32 s43, s43, {32*896}
s_cmp_lg_u32 s26, 0
s_waitcnt lgkmcnt(0)
s_barrier
s_cbranch_scc1 RA_other""")
    if not OPT.get("ack"): stamp(a, prof, 2)
    for w in range(4):
        a(f"ds_read_b128 v[{M+4*w}:{M+4*w+3}], v8 offset:{1024*w}\nds_read_b32 v{M+16+w}, v8 offset:{4096+1024*w}")
    X0, Y, R, E = M, M+16, M+20, M+21
    a(f"""s_cmp_eq_u32 s49, 0
s_waitcnt lgkmcnt(4)
v_pk_add_f32 v[{M}:{M+1}], v[{M}:{M+1}], v[{M+4}:{M+5}]
v_pk_add_f32 v[{M+2}:{M+3}], v[{M+2}:{M+3}], v[{M+6}:{M+7}]
v_add_f32 v{Y}, v{Y}, v{Y+1}
s_waitcnt lgkmcnt(0)
v_pk_add_f32 v[{M+8}:{M+9}], v[{M+8}:{M+9}], v[{M+12}:{M+13}]
v_pk_add_f32 v[{M+10}:{M+11}], v[{M+10}:{M+11}], v[{M+14}:{M+15}]
v_add_f32 v{Y+2}, v{Y+2}, v{Y+3}
v_pk_add_f32 v[{M}:{M+1}], v[{M}:{M+1}], v[{M+8}:{M+9}]
v_pk_add_f32 v[{M+2}:{M+3}], v[{M+2}:{M+3}], v[{M+10}:{M+11}]
v_add_f32 v{Y}, v{Y}, v{Y+2}
v_max3_f32 v{R}, v{M}, v{M+1}, v{M+2}
v_max3_f32 v{R}, v{M+3}, v{Y}, v{R}""")
    steps = ("quad_perm:[1,0,3,2]", "quad_perm:[2,3,0,1]", "row_half_mirror")
    for mod in steps: a(f"v_max_f32_dpp v{R}, v{R}, v{R} {mod} {DPM}:0xf")
    a(f"""v_sub_f32 v{Y}, v{Y}, v{R}
v_sub_f32 v{M}, v{M}, v{R}
v_exp_f32 v{Y}, v{Y}
v_sub_f32 v{M+1}, v{M+1}, v{R}
v_exp_f32 v{M}, v{M}
v_sub_f32 v{M+2}, v{M+2}, v{R}
v_exp_f32 v{M+1}, v{M+1}
v_sub_f32 v{M+3}, v{M+3}, v{R}
v_exp_f32 v{M+2}, v{M+2}
v_add_f32 v{R}, v{Y}, v{M}
v_exp_f32 v{M+3}, v{M+3}
v_add_f32 v{R}, v{R}, v{M+1}
v_add_f32 v{R}, v{R}, v{M+2}
v_add_f32 v{R}, v{R}, v{M+3}
v_mov_b32_dpp v{Y+1}, v{Y} quad_perm:[1,0,3,2] {DPM}:0xf""")
    for mod in steps: a(f"v_add_f32_dpp v{R}, v{R}, v{R} {mod} {DPM}:0xf")
    a(f"""v_rcp_f32 v{R}, v{R}
v_pk_mul_f32 v[{M}:{M+1}], v[{M}:{M+1}], v[{R}:{R+1}] op_sel_hi:[1,0]
v_pk_mul_f32 v[{M+2}:{M+3}], v[{M+2}:{M+3}], v[{R}:{R+1}] op_sel_hi:[1,0]
v_pk_mul_f32 v[{Y}:{Y+1}], v[{Y}:{Y+1}], v[{R}:{R+1}] op_sel_hi:[1,0]
v_cvt_pk_bf16_f32 v{M}, v{M}, v{M+1}
v_cvt_pk_bf16_f32 v{M+1}, v{M+2}, v{M+3}
v_cvt_pk_bf16_f32 v{Y}, v{Y}, v{Y+1}
v_min_u32 v{M}, -2, v{M}
v_min_u32 v{M+1}, -2, v{M+1}
v_min_u32 v{Y}, -2, v{Y}
s_cbranch_scc1 RA_slow
buffer_store_dwordx2 v[{M}:{M+1}], v9, {WSR}, s42 offen
buffer_store_dword v{Y}, v0, {WSR}, s42 offen
RA_st:""")
    if OPT.get("ack"):
        stamp(a, prof, 2); a("s_waitcnt vmcnt(0)")
    stamp(a, prof, 3)
    a("s_barrier")
    a("s_add_u32 s42, s42, 10240")
    if OPT.get("xlat"): a("s_memtime s[62:63]\ns_waitcnt lgkmcnt(0)")
    if not OPT.get("nox"): xk_loads()
    for i in range(28): a(f"v_mov_b32 v{T+i}, 0")
    if OPT.get("xlat"): a("s_memtime s[64:65]\ns_waitcnt vmcnt(0)\ns_memtime s[66:67]")
    if prof: prof_log(a, M)
    a("""s_cmp_lt_u32 s40, 63
s_cbranch_scc1 RA_loop""")
    if prof: prof_dump(a, M, 0)
    a(f"""s_endpgm
RA_other:
s_cmp_lg_u32 s26, 1
s_cbranch_scc1 RA_st""")
    if OPT.get("hint"):
        for k in range(int(OPT.get("plead", 0)) // 64): a("s_nop 15")
        a(f"s_lshl_b32 s33, s27, 2\ns_add_u32 s33, s33, s41\ns_sub_u32 s33, s33, 4096")
        hint_send(a, "s33", HP-4096, 1)
    a(f"""s_branch RA_st
RA_slow:
buffer_store_dwordx2 v[{M}:{M+1}], v9, {WSR}, s42 offen sc1
buffer_store_dword v{Y}, v0, {WSR}, s42 offen sc1
s_branch RA_st""")

def role_B(a, force=None, prof=False):
    M = 16; U = 44; Z = 76; UB = 108; TMP = 116; KEEP = 132; FLG = 134
    NREG = 46
    def opidx(t, j):
        if t < 6: return t*7 + j
        return 42 + (t-6)*2 + j if j < 2 else NREG + (t-6)*5 + (j-2)
    def breg(o, half=None):
        b = 8*o
        k, bb = ("a", b) if o < 32 else ("v", 144 + b - 256)
        if half is None: return f"{k}[{bb}:{bb+7}]"
        return f"{k}[{bb+4*half}:{bb+4*half+3}]"
    a("R_B:")
    team_common(a, "RB")
    a(f"""s_lshl_b32 s34, s26, 2
s_mul_i32 s34, s34, 28
s_lshl_b32 s35, s27, 1
s_add_u32 s34, s34, s35
s_mul_i32 s34, s34, {14*1024}
s_add_u32 s34, s34, {hex(OFF_WB)}
s_mul_i32 s37, s26, {20*1024}
s_add_u32 s37, s37, {WLB}""")
    for t in range(8):
        for j in range(7):
            o = opidx(t, j)
            a(f"s_lshl_b32 s36, s{50+j}, 1\ns_add_u32 s36, s36, s34")
            off = ((t >> 1)*28 + (t & 1))*14*1024
            if off: a(f"s_add_u32 s36, s36, {off}")
            if o >= NREG:
                a(f"s_add_u32 m0, s37, {(o-NREG)*2048}")
            for e in range(2):
                if o < NREG: a(f"buffer_load_dwordx4 {breg(o, e)}, v2, {WSR}, s36 offen offset:{e*1024}")
                else: a(f"buffer_load_dwordx4 v2, {WSR}, s36 offen offset:{e*1024} lds")
    a(f"""v_and_b32 v12, 7, v4
v_lshrrev_b32 v13, 3, v4
v_lshlrev_b32 v3, 7, v3
v_lshl_add_u32 v3, v12, 4, v3
v_lshl_add_u32 v5, v13, 9, v3
s_lshl_b32 s33, s26, 10
s_add_u32 s33, s33, {RB}
v_add_u32 v6, s33, v2
v_add_u32 v7, s37, v2
v_lshl_add_u32 v8, v13, 3, v3
s_lshl_b32 s33, s27, 9
v_add_u32 v8, s33, v8
v_mov_b32 v14, {hex(OOB)}
v_cmp_gt_u32 vcc, 64, v0
v_cndmask_b32 v4, v14, v8, vcc
v_cmp_eq_u32 vcc, 64, v0
v_cndmask_b32 v10, v14, 0, vcc
v_and_b32 v9, 3, v1
s_lshl_b32 s33, s26, 2
v_add_u32 v9, s33, v9
v_lshlrev_b32 v9, 2, v9
v_mov_b32 v11, 1
v_mov_b32 v28, 0x44444444
v_mov_b32 v29, 0xeeeeeeee
v_cmp_eq_u32 vcc, 0, v13
v_cndmask_b32 v1, v29, v28, vcc
s_mov_b32 s40, 0
s_mov_b32 s41, {hex(OFF_MF)}
s_mul_i32 s42, s26, 2560
s_add_u32 s42, s42, {hex(OFF_PM)}
s_lshl_b32 s43, s26, 2
s_mul_i32 s43, s43, 28
s_lshl_b32 s33, s27, 1
s_add_u32 s43, s43, s33
s_lshl_b32 s43, s43, 10
s_add_u32 s43, s43, {hex(OFF_Z)}
s_mul_i32 s46, s26, 28
s_add_u32 s46, s46, s33
s_lshl_b32 s46, s46, 10
s_add_u32 s46, s46, {hex(OFF_U - 4*28*1024)}
s_lshl_b32 s47, s26, 10
s_add_u32 s47, s47, {hex(OFF_ZF)}
s_mov_b32 s72, 0
s_lshl_b32 s48, s27, 2
s_add_u32 s48, s48, {hex(OFF_FL + FL_U*4 - 512)}""")
    team_mode(a, "RB", force)
    for i in range(32): a(f"v_mov_b32 v{U+i}, 0")
    a("RB_loop:")
    a(f"""s_add_u32 s44, s41, s50
s_add_u32 s45, s41, s51
v_add_u32 v12, s50, v2
v_add_u32 v13, s51, v2
s_add_u32 s58, s41, {hex(OFF_MX-OFF_MF)}
s_cmp_eq_u32 s40, 0
s_cselect_b32 s57, {hex(OOB)}, s46
s_cselect_b32 s58, {hex(OOB)}, s58
s_cmp_lt_u32 s40, 2
s_cselect_b32 s59, {hex(OOB)}, s48
s_cmp_eq_u32 s40, 63
s_cselect_b32 s68, {hex(OOB)}, s43
s_cbranch_scc1 RB_zok
s_cmp_lt_u32 s40, s72
s_cbranch_scc1 RB_zok
RB_zspin:
buffer_load_dwordx4 v[{TMP}:{TMP+3}], v2, {WSR}, s47 offen sc1
s_waitcnt vmcnt(0)
v_and_b32 v{TMP}, v{TMP}, v{TMP+1}
v_and_b32 v{TMP+2}, v{TMP+2}, v{TMP+3}
v_and_b32 v{TMP}, v{TMP}, v{TMP+2}
v_cmp_eq_u32 vcc, 0, v{TMP}
s_ff1_i32_b64 s72, vcc
s_min_u32 s72, s72, 64
s_cmp_lt_u32 s40, s72
s_cbranch_scc1 RB_zok
s_sleep 2
s_branch RB_zspin
RB_zok:
s_add_u32 s69, s68, {28*1024}
s_add_u32 s70, s68, {2*28*1024}
s_add_u32 s71, s68, {3*28*1024}""")
    slow = []
    if not OPT.get("noz"):
        for hl in range(4):
            for ctl in range(2):
                b = Z + (hl*2+ctl)*4
                slow.append(f"buffer_load_dwordx4 v[{b}:{b+3}], v2, {WSR}, s{68+hl} offen offset:{ctl*1024} {OPT.get('zld', 'sc1')}")
    slow += [f"buffer_store_dwordx2 v[{KEEP}:{KEEP+1}], v4, {WSR}, s58 offen sc1",
             f"buffer_store_dwordx4 v[{UB}:{UB+3}], v2, {WSR}, s57 offen sc1",
             f"buffer_store_dwordx4 v[{UB+4}:{UB+7}], v2, {WSR}, s57 offen offset:1024 sc1",
             f"buffer_store_dword v11, v10, {WSR}, s59 offen sc1"]
    if OPT.get("ust"): slow = [x.replace(" sc1", " " + OPT["ust"].replace("+", " ")) if "store" in x else x for x in slow]
    if int(OPT.get("sfirst", 1)): slow = slow[8:] + slow[:8]
    if OPT.get("nou"): slow = [x for x in slow if "store" not in x]
    if int(OPT.get("early", 0)):
        if OPT.get("slat"):
            a("s_memtime s[60:61]\ns_waitcnt lgkmcnt(0)")
            for x in slow: a(x)
            a("s_memtime s[62:63]\ns_waitcnt vmcnt(4)\ns_memtime s[64:65]\ns_waitcnt vmcnt(0)\ns_memtime s[66:67]\ns_waitcnt lgkmcnt(0)")
            prof_log(a, TMP)
            prof = 0
        else:
            for x in [slow[8]] + slow[:8] + slow[9:]: a(x)
        slow = []
    if int(OPT.get("bsleep", 0)): a(f"s_sleep {OPT['bsleep']}")
    poll_m(a, "RB_poll", M, int(OPT.get("bd", 1)))
    if not OPT.get("cnt"): stamp(a, prof, 0)
    def sm(t, j, src=None):
        a(f"v_smfmac_f32_16x16x64_bf16 v[{U+4*t}:{U+4*t+3}], v[{M+4*j}:{M+4*j+3}], {src or breg(opidx(t, j))}, v1")
    tmp = [0, 12, 13, 14, 15]
    for t in range(8):
        sm(t, 0)
        if t < 5: a(f"v_add_u32 v{tmp[t]}, s{52+t}, v2")
        if slow and (t >= 5 or int(OPT.get("soon", 1))): a(slow.pop(0))
    a("s_waitcnt lgkmcnt(0)\ns_barrier")
    rd = [f"ds_read_b128 v[{M+4*j}:{M+4*j+3}], v{tmp[j-2]} offset:{MB}" for j in range(2, 7)]
    def lw(k):
        b = TMP + 8*(k & 1)
        return [f"ds_read_b128 v[{b}:{b+3}], v7 offset:{k*2048}", f"ds_read_b128 v[{b+4}:{b+7}], v7 offset:{k*2048+1024}"]
    rd += lw(0)
    for t in range(8):
        sm(t, 1)
        if rd: a(rd.pop(0))
        if slow and int(OPT.get("soon", 1)) > 1: a(slow.pop(0))
    a("s_waitcnt lgkmcnt(2)")
    def xform(ctl):
        u = lambda hl, r: U + 4*(hl*2+ctl) + r
        o = UB + 4*ctl; L = []
        for r in range(4):
            L += [f"v_permlane32_swap_b32 v{u(0,r)}, v{u(2,r)}", f"v_permlane32_swap_b32 v{u(1,r)}, v{u(3,r)}"]
        for r in range(4):
            L += [f"v_add_f32 v{u(0,r)}, v{u(0,r)}, v{u(2,r)}", f"v_add_f32 v{u(1,r)}, v{u(1,r)}, v{u(3,r)}"]
        L += [f"v_cvt_pk_bf16_f32 v{o}, v{u(0,0)}, v{u(0,1)}", f"v_cvt_pk_bf16_f32 v{o+1}, v{u(0,2)}, v{u(0,3)}",
              f"v_cvt_pk_bf16_f32 v{o+2}, v{u(1,0)}, v{u(1,1)}", f"v_cvt_pk_bf16_f32 v{o+3}, v{u(1,2)}, v{u(1,3)}",
              f"v_permlane16_swap_b32 v{o}, v{o+2}", f"v_permlane16_swap_b32 v{o+1}, v{o+3}"]
        return L
    regl = [(t, j) for c in range(2) for t in (c, 2+c, 4+c) for j in range(2, 7)]
    x0 = xform(0)
    for k in range(10):
        f = (lw(k+1) if k < 9 else []) + ([slow.pop(0)] if slow else [])
        for (t, j) in regl[3*k:3*k+3]:
            sm(t, j)
            if f: a(f.pop(0))
            if k >= 6 and x0: a(x0.pop(0))
        a(f"s_waitcnt lgkmcnt({2 if k < 9 else 0})")
        b = TMP + 8*(k & 1)
        sm(6 + k//5, 2 + k % 5, f"v[{b}:{b+7}]")
        if k >= 5 and x0: a(x0.pop(0))
    assert not slow
    for l in x0 + xform(1): a(l)
    a(f"""s_add_u32 s46, s46, {4*28*1024}
s_add_u32 s48, s48, 256
s_cmp_eq_u32 s40, 63
s_cbranch_scc1 RB_last""")
    if not OPT.get("quick"): stamp(a, prof, 1)
    for i in range(32): a(f"v_mov_b32 v{U+i}, 0")
    a(f"s_lshl_b32 s73, s27, 2\ns_add_u32 s73, s73, s26\ns_lshl_b32 s73, s73, 2\ns_add_u32 s73, s73, s41\ns_add_u32 s73, s73, {8192+4096}")
    E0, O0 = TMP, TMP+8
    def mf(d, b, p, first):
        a(f"v_mfma_f32_16x16x32_bf16 v[{d}:{d+3}], v[{b}:{b+3}], v[{p}:{p+3}], {'0' if first else f'v[{d}:{d+3}]'}")
    PD = int(OPT.get("pd", 1))
    rnd = f"""buffer_load_dwordx4 v[{M}:{M+3}], v5, {WSR}, s42 offen sc1
buffer_load_dwordx4 v[{M+4}:{M+7}], v5, {WSR}, s42 offen offset:1024 sc1
buffer_load_dwordx4 v[{M+8}:{M+11}], v3, {WSR}, s42 offen offset:2048 sc1"""
    if OPT.get("hint") and not OPT.get("nophint"):
        a("s_add_u32 s33, s41, 4096")
        a(f"v_lshrrev_b32 v{M+13}, 2, v2\nv_min_u32 v{M+13}, 60, v{M+13}")
        hint_wait(a, "RB_hp", M+13 if OPT.get("h1") else 9, M+12, "s33", HP-4096, int(OPT.get("hd", 3)), int(OPT.get("pdelay", 0)))
    if OPT.get("cnt"):
        stamp(a, prof, 0); a("s_mov_b32 s64, 0")
    for k in range(PD):
        a(rnd)
        if k < PD-1: a(f"s_sleep {OPT.get('gap', 1)}")
    a("RB_pollp:")
    if OPT.get("cnt"): a("s_add_u32 s64, s64, 1")
    a(f"""s_waitcnt vmcnt({3*PD-1})
v_max3_u32 v14, v{M}, v{M+1}, v{M+2}
v_max_u32 v14, v14, v{M+3}
v_cmp_eq_u32 vcc, -1, v14""")
    if OPT.get("pace"):
        a(f"s_cbranch_vccz RB_pgo\ns_nop {int(OPT['pace'])//4-1}\n{rnd}\ns_branch RB_pollp\nRB_pgo:\n{rnd}")
    else:
        a(f"{rnd}\ns_cbranch_vccnz RB_pollp")
    if OPT.get("quick"): stamp(a, prof, 1)
    xstamp(a, prof, 76)
    mf(E0, Z, M, True); mf(O0, Z + 8, M, True)
    a(f"s_waitcnt vmcnt({3*PD+1})")
    mf(E0+4, Z + 4, M, True); a(f"v_max3_u32 v14, v{M+4}, v{M+5}, v{M+6}")
    mf(O0+4, Z + 12, M, True); a(f"v_max_u32 v14, v14, v{M+7}")
    mf(O0, Z + (3*2+0)*4, M+4, False)
    mf(O0+4, Z + (3*2+1)*4, M+4, False)
    a(f"s_waitcnt vmcnt({3*PD})")
    mf(E0, Z + (2*2+0)*4, M+4, False); a(f"v_max3_u32 v15, v{M+8}, v{M+9}, v{M+10}")
    mf(E0+4, Z + (2*2+1)*4, M+4, False); a(f"v_max3_u32 v14, v14, v15, v{M+11}")
    mf(E0, UB, M+8, False); a("v_cmp_eq_u32 vcc, -1, v14")
    mf(E0+4, UB+4, M+8, False)
    X = 136
    for r in range(4): a(f"v_add_f32_dpp v{X+r}, v{O0+r}, v{E0+r} row_ror:8 {DPM}:0x3")
    a("s_cbranch_vccnz RB_pollp")
    if not OPT.get("cnt"): stamp(a, prof, 2)
    if OPT.get("hint"):
        if OPT.get("hw"):
            a(f"s_cmp_lg_u32 s26, {OPT['hw']}\ns_cbranch_scc1 RB_nohs")
        hint_send(a, "s73", HM-4096, 11)
        a("RB_nohs:")
    for r in range(4): a(f"v_add_f32_dpp v{X+r}, v{E0+4+r}, v{O0+4+r} row_ror:8 {DPM}:0xc")
    a(f"""s_add_u32 s41, s41, 8192
s_add_u32 s42, s42, 10240
s_add_u32 s43, s43, {16*28*1024}
s_add_u32 s40, s40, 1
s_cmp_lg_u32 s26, 0
s_cbranch_scc1 RB_wr
s_cmp_eq_u32 s49, 0
s_barrier""")
    xstamp(a, prof, 78)
    for w in range(1, 4):
        a(f"ds_read_b128 v[{TMP+4*w}:{TMP+4*w+3}], v2 offset:{RB + 1024*w}")
    a(f"""s_waitcnt lgkmcnt(2)
v_pk_add_f32 v[{TMP}:{TMP+1}], v[{X}:{X+1}], v[{TMP+4}:{TMP+5}]
v_pk_add_f32 v[{TMP+2}:{TMP+3}], v[{X+2}:{X+3}], v[{TMP+6}:{TMP+7}]
s_waitcnt lgkmcnt(0)
v_pk_add_f32 v[{TMP+8}:{TMP+9}], v[{TMP+8}:{TMP+9}], v[{TMP+12}:{TMP+13}]
v_pk_add_f32 v[{TMP+10}:{TMP+11}], v[{TMP+10}:{TMP+11}], v[{TMP+14}:{TMP+15}]
v_pk_add_f32 v[{TMP}:{TMP+1}], v[{TMP}:{TMP+1}], v[{TMP+8}:{TMP+9}]
v_pk_add_f32 v[{TMP+2}:{TMP+3}], v[{TMP+2}:{TMP+3}], v[{TMP+10}:{TMP+11}]
v_cvt_pk_bf16_f32 v{KEEP}, v{TMP}, v{TMP+1}
v_cvt_pk_bf16_f32 v{KEEP+1}, v{TMP+2}, v{TMP+3}
v_min_u32 v{KEEP}, -2, v{KEEP}
v_min_u32 v{KEEP+1}, -2, v{KEEP+1}
s_cbranch_scc1 RB_slow
buffer_store_dwordx2 v[{KEEP}:{KEEP+1}], v8, {WSR}, s41 offen
RB_next:""")
    stamp(a, prof, 3)
    if int(OPT.get("early", 0)): a("s_barrier")
    if prof: prof_log(a, TMP)
    a(f"""s_branch RB_loop
RB_wr:
ds_write_b128 v6, v[{X}:{X+3}]
s_waitcnt lgkmcnt(0)
s_barrier
s_cmp_lg_u32 s26, 1
s_cbranch_scc1 RB_next""")
    a(f"""s_branch RB_next
RB_slow:
buffer_store_dwordx2 v[{KEEP}:{KEEP+1}], v8, {WSR}, s41 offen sc1
s_branch RB_next
RB_last:""")
    if prof or OPT.get('slat'): prof_dump(a, TMP, 16)
    a(f"""buffer_store_dwordx4 v[{UB}:{UB+3}], v2, {WSR}, s46 offen sc1
buffer_store_dwordx4 v[{UB+4}:{UB+7}], v2, {WSR}, s46 offen offset:1024 sc1
s_waitcnt vmcnt(0)
s_barrier
buffer_store_dword v11, v10, {WSR}, s48 offen sc1
buffer_store_dword v11, v10, {WSR}, s48 offen offset:256 sc1
s_endpgm""")

def role_H(a):
    ZA = int(OPT.get("za", 2))
    def zpref(tag):
        a(f"""{tag}:
buffer_load_dword v7, v13, {WSR}, s46 offen sc1
s_waitcnt vmcnt(0)
v_cmp_eq_u32 vcc, 0, v7
s_cbranch_vccz {tag}_go
s_sleep 8
s_branch {tag}
{tag}_go:
s_mov_b32 s33, s47""")
        for k in range(7):
            a(f"buffer_load_dword v8, v9, {WSR}, s33 offen {OPT.get('hz', '')}")
            if OPT.get("z64"): a(f"buffer_load_dword v8, v9, {WSR}, s33 offen offset:64 {OPT.get('hz', '')}")
            if k < 6: a("s_add_u32 s33, s33, 32768")
        a(f"s_add_u32 s46, s46, 16\ns_add_u32 s47, s47, {16*28*1024}")
    a(f"""R_H:
s_and_b32 s27, s27, 1
v_lshlrev_b32 v9, 7, v0
v_mov_b32 v6, 0
v_mov_b32 v10, {hex(OOB)}
s_cmp_eq_u32 s27, 0
s_cselect_b32 s33, 224, 0
s_cselect_b32 s34, 64, 0
s_cselect_b32 s35, 80, 0
v_cmp_gt_u32 vcc, s33, v0
v_cndmask_b32 v5, v10, v9, vcc
v_cmp_gt_u32 vcc, s34, v0
v_cndmask_b32 v11, v10, v9, vcc
v_cmp_gt_u32 vcc, s35, v0
v_cndmask_b32 v12, v10, v9, vcc
v_and_b32 v13, 3, v0
v_lshlrev_b32 v13, 2, v13
v_and_b32 v14, 4, v0
v_lshl_add_u32 v13, v14, 8, v13
s_lshl_b32 s46, s27, 11
s_add_u32 s46, s46, {hex(OFF_ZF)}
s_mul_i32 s47, s27, {8*28*1024}
s_add_u32 s47, s47, {hex(OFF_Z)}
s_mov_b32 s40, 0
s_mov_b32 s41, {hex(OFF_MF)}
s_mov_b32 s43, {hex(OFF_XN + 32*896)}
s_mov_b32 s44, {hex(OFF_MF + 8192)}
s_mov_b32 s45, {hex(OFF_PM)}
buffer_load_dword v8, v5, {WSR}, s43 offen
buffer_load_dword v8, v11, {WSR}, s44 offen
buffer_load_dword v8, v12, {WSR}, s45 offen""")
    ZP = int(OPT.get("zp", 0))
    if not ZP: a("s_cmp_lg_u32 s27, 0\ns_cbranch_scc1 M_end")
    for k in range(ZA if ZP else 0): zpref(f"RH_z{k}")
    a(f"""RH_loop:
buffer_load_dword v7, v6, {WSR}, s41 offen sc1
s_waitcnt vmcnt(0)
v_readfirstlane_b32 s33, v7
s_cmp_lg_u32 s33, -1
s_cbranch_scc1 RH_go
s_sleep 4
s_branch RH_loop
RH_go:
s_add_u32 s43, s43, {32*896}
s_add_u32 s44, s44, 8192
s_add_u32 s45, s45, 10240
buffer_load_dword v8, v11, {WSR}, s44 offen
buffer_load_dword v8, v12, {WSR}, s45 offen
buffer_load_dword v8, v5, {WSR}, s43 offen
s_cmp_ge_u32 s40, {63-ZA}
s_cbranch_scc1 RH_noz""")
    if ZP: zpref("RH_zl")
    a(f"""RH_noz:
s_add_u32 s41, s41, 8192
s_add_u32 s40, s40, 1
s_cmp_lt_u32 s40, 62
s_cbranch_scc1 RH_loop
s_endpgm""")
```

```python
from main_roles import *
OOB = 0x40000000
DPM = "row_mask:0xf bank_mask:0xf"
NEGBIG = f32(-1e9*LOG2E)

def xrow_reduce(a, op, r, t):
    a(f"""v_mov_b32 v{t}, v{r}
v_permlane16_swap_b32 v{r}, v{t}
{op} v{r}, v{r}, v{t}
v_mov_b32 v{t}, v{r}
v_permlane32_swap_b32 v{r}, v{t}
{op} v{r}, v{r}, v{t}""")

def role_T(a):
    KEY = 88; SX = 2*XB; SX2 = SX + 16384
    Sa = lambda kt, t: acc(2*kt+1, t)
    a("R_T:")
    tile_map(a)
    a(f"""s_mov_b32 s40, s28
s_mul_i32 s43, s26, {7*1024}
s_mul_i32 s41, s40, {XB}
s_add_u32 s41, s41, s43
s_add_u32 s41, s41, {hex(OFF_XP)}
s_mov_b32 s42, s43
s_mov_b32 s44, 0""")
    x_dma(a, "s41", "s42")
    load_weights_natural(a, OFF_WA)
    a(f"""s_lshr_b32 s37, s30, 1
s_lshr_b32 s38, s31, 1
s_lshl_b32 s33, s37, 10
v_add_u32 v5, s33, v2
s_lshl_b32 s33, s38, 10
s_lshl_b32 s34, s32, 3
s_add_u32 s33, s33, s34
v_add_u32 v6, s33, v2
v_lshrrev_b32 v16, 2, v4
v_and_b32 v17, 1, v4
v_lshl_add_u32 v17, v16, 1, v17
v_lshlrev_b32 v17, 4, v17
v_lshl_add_u32 v17, v3, 7, v17
s_lshl_b32 s33, s37, 9
v_add_u32 v8, s33, v17
s_lshl_b32 s33, s38, 9
s_add_u32 s33, s33, s34
v_add_u32 v9, s33, v17
s_lshl_b32 s33, s26, 12
s_add_u32 s33, s33, {SX}
v_add_u32 v10, s33, v2
s_lshl_b32 s33, s32, 10
s_add_u32 s33, s33, {SX}
v_add_u32 v11, s33, v2
v_and_b32 v18, 3, v4
v_lshl_add_u32 v12, v16, 3, v18
s_lshl_b32 s33, s32, 2
v_add_u32 v12, s33, v12
v_lshlrev_b32 v18, 3, v3
v_sub_u32 v12, v12, v18
s_and_b32 s33, s27, 3
s_lshl_b32 s33, s33, 8
s_lshr_b32 s34, s27, 2
s_lshl_b32 s34, s34, 11
s_add_u32 s33, s33, s34
s_lshl_b32 s34, s32, 10
s_add_u32 s33, s33, s34
s_add_u32 s33, s33, 32768
v_lshlrev_b32 v13, 4, v4
v_lshl_add_u32 v13, v3, 2, v13
v_add_u32 v13, s33, v13
v_mov_b32 v16, {hex(OOB)}
v_cmp_eq_u32 vcc, 0, v0
v_cndmask_b32 v14, v16, 0, vcc
v_mov_b32 v15, 1
s_lshl_b32 s45, s27, 2
s_add_u32 s45, s45, {hex(OFF_FL + FL_P*4)}
s_lshl_b32 s50, s27, 1
s_add_u32 s50, s50, s32
s_lshl_b32 s50, s50, 10
s_mov_b32 s51, {NEGBIG}
s_waitcnt vmcnt(0)
s_barrier""")
    a("RT_loop:")
    a(f"""s_mul_i32 s46, s40, {XB}
s_add_u32 s46, s46, {hex(OFF_XN)}
s_add_u32 s47, s46, {14*1024}""")
    for kt in range(2):
        b = KEY + 14*kt; so = "s47" if kt else "s46"
        for p in range(3):
            a(f"buffer_load_dwordx4 v[{b+4*p}:{b+4*p+3}], v5, {WSR}, {so} offen offset:{p*1024}")
        a(f"buffer_load_dwordx2 v[{b+12}:{b+13}], v6, {WSR}, {so} offen")
    a(f"""v_add_u32 v7, s44, v2
s_xor_b32 s44, s44, {XB}
s_add_u32 s42, s44, s43
s_add_u32 s47, s40, {NT}
s_min_u32 s47, s47, 63
s_mul_i32 s41, s47, {XB}
s_add_u32 s41, s41, s43
s_add_u32 s41, s41, {hex(OFF_XP)}""")
    x_dma(a, "s41", "s42")
    gemm_segment(a, True, "v7")
    for t in range(2):
        for p in range(3):
            d0 = acc(2*p, t); d1 = acc(2*p+1, t)
            a(f"""v_cvt_pk_bf16_f32 v{d0}, v{d0}, v{d0+1}
v_cvt_pk_bf16_f32 v{d0+1}, v{d0+2}, v{d0+3}
v_cvt_pk_bf16_f32 v{d0+2}, v{d1}, v{d1+1}
v_cvt_pk_bf16_f32 v{d0+3}, v{d1+2}, v{d1+3}""")
        d0 = acc(6, t)
        a(f"v_cvt_pk_bf16_f32 v{d0}, v{d0}, v{d0+1}\nv_cvt_pk_bf16_f32 v{d0+1}, v{d0+2}, v{d0+3}")
    a("s_waitcnt vmcnt(7)")
    def smf(kt, t, p, keybase):
        d = Sa(kt, t); c = "0" if p == 0 else f"v[{d}:{d+3}]"
        if p < 3: a(f"v_mfma_f32_16x16x32_bf16 v[{d}:{d+3}], v[{keybase+4*p}:{keybase+4*p+3}], v[{acc(2*p,t)}:{acc(2*p,t)+3}], {c}")
        else: a(f"v_mfma_f32_16x16x16_bf16 v[{d}:{d+3}], v[{keybase+12}:{keybase+13}], v[{acc(6,t)}:{acc(6,t)+1}], {c}")
    for p in range(4):
        for kt in range(2):
            for t in range(2): smf(kt, t, p, KEY + 14*kt)
    for kt in range(2):
        for t in range(2):
            a(f"ds_write_b128 v10, v[{Sa(kt,t)}:{Sa(kt,t)+3}] offset:{(kt*2+t)*1024}")
    a(f"""s_lshl_b32 s46, s40, 13
s_add_u32 s46, s46, {hex(OFF_MX)}
s_cmp_gt_u32 s26, 1
s_waitcnt lgkmcnt(0)
s_barrier
s_cbranch_scc1 RT_poll""")
    X = KEY
    for kt in range(2):
        tm = [X + 4*kt, KEY+8, KEY+12, KEY+16]
        for w in range(4): a(f"ds_read_b128 v[{tm[w]}:{tm[w]+3}], v11 offset:{w*4096 + kt*2048}")
        a("s_waitcnt lgkmcnt(0)")
        for h2 in range(2):
            o = 2*h2
            a(f"""v_pk_add_f32 v[{tm[0]+o}:{tm[0]+o+1}], v[{tm[0]+o}:{tm[0]+o+1}], v[{tm[1]+o}:{tm[1]+o+1}]
v_pk_add_f32 v[{tm[2]+o}:{tm[2]+o+1}], v[{tm[2]+o}:{tm[2]+o+1}], v[{tm[3]+o}:{tm[3]+o+1}]
v_pk_add_f32 v[{tm[0]+o}:{tm[0]+o+1}], v[{tm[0]+o}:{tm[0]+o+1}], v[{tm[2]+o}:{tm[2]+o+1}]""")
    a(f"v_mov_b32 v{KEY+8}, s51")
    for s in range(8):
        a(f"v_cmp_le_i32 vcc, {s}, v12\nv_cndmask_b32 v{X+s}, v{KEY+8}, v{X+s}, vcc")
    MKT = RING
    a(f"""RT_poll:
buffer_load_dwordx4 v[{MKT}:{MKT+3}], v8, {WSR}, s46 offen sc1
buffer_load_dwordx4 v[{MKT+4}:{MKT+7}], v8, {WSR}, s46 offen offset:512 sc1
buffer_load_dwordx4 v[{MKT+8}:{MKT+11}], v8, {WSR}, s46 offen offset:1024 sc1
buffer_load_dwordx2 v[{MKT+12}:{MKT+13}], v9, {WSR}, s46 offen sc1
s_waitcnt vmcnt(0)
v_max3_u32 v{MKT+14}, v{MKT}, v{MKT+1}, v{MKT+2}
v_max3_u32 v{MKT+15}, v{MKT+3}, v{MKT+4}, v{MKT+5}
v_max3_u32 v{MKT+14}, v{MKT+6}, v{MKT+7}, v{MKT+14}
v_max3_u32 v{MKT+15}, v{MKT+8}, v{MKT+9}, v{MKT+15}
v_max3_u32 v{MKT+14}, v{MKT+10}, v{MKT+11}, v{MKT+14}
v_max3_u32 v{MKT+15}, v{MKT+12}, v{MKT+13}, v{MKT+15}
v_max_u32 v{MKT+14}, v{MKT+14}, v{MKT+15}
v_cmp_eq_u32 vcc, -1, v{MKT+14}
s_cbranch_vccz RT_got
s_sleep 4
s_branch RT_poll
RT_got:""")
    for p in range(4):
        for t in range(2): smf(2, t, p, MKT)
    a(f"""v_subrev_u32 v{MKT+14}, {SX}, v10
v_lshrrev_b32 v{MKT+14}, 1, v{MKT+14}
v_add_u32 v{MKT+14}, {SX2}, v{MKT+14}""")
    for t in range(2):
        a(f"ds_write_b64 v{MKT+14}, v[{Sa(2,t)}:{Sa(2,t)+1}] offset:{t*512}")
    a(f"""s_mul_i32 s47, s40, 40960
s_add_u32 s47, s47, {hex(OFF_PT)}
s_add_u32 s48, s47, s50
s_cmp_gt_u32 s26, 1
s_waitcnt lgkmcnt(0)
s_barrier
s_cbranch_scc1 RT_join
v_subrev_u32 v{MKT+14}, {SX}, v11
v_lshrrev_b32 v{MKT+14}, 1, v{MKT+14}
v_add_u32 v{MKT+14}, {SX2}, v{MKT+14}""")
    Y = KEY + 8; R = KEY + 16; TT = KEY + 17
    for w in range(4): a(f"ds_read_b64 v[{Y+2*w}:{Y+2*w+1}], v{MKT+14} offset:{w*2048}")
    a(f"""v_max3_f32 v{R}, v{X}, v{X+1}, v{X+2}
v_max3_f32 v{TT}, v{X+3}, v{X+4}, v{X+5}
v_max3_f32 v{R}, v{X+6}, v{X+7}, v{R}
s_waitcnt lgkmcnt(0)
v_pk_add_f32 v[{Y}:{Y+1}], v[{Y}:{Y+1}], v[{Y+2}:{Y+3}]
v_pk_add_f32 v[{Y+4}:{Y+5}], v[{Y+4}:{Y+5}], v[{Y+6}:{Y+7}]
v_pk_add_f32 v[{Y}:{Y+1}], v[{Y}:{Y+1}], v[{Y+4}:{Y+5}]
v_max3_f32 v{R}, v{R}, v{TT}, v{Y}
v_max_f32 v{R}, v{R}, v{Y+1}""")
    xrow_reduce(a, "v_max_f32", R, TT)
    for i in range(10): a(f"v_sub_f32 v{X+i}, v{X+i}, v{R}")
    for i in range(10): a(f"v_exp_f32 v{X+i}, v{X+i}")
    a(f"""v_pk_add_f32 v[{Y+2}:{Y+3}], v[{X}:{X+1}], v[{X+2}:{X+3}]
v_pk_add_f32 v[{Y+4}:{Y+5}], v[{X+4}:{X+5}], v[{X+6}:{X+7}]
v_pk_add_f32 v[{Y+2}:{Y+3}], v[{Y+2}:{Y+3}], v[{Y}:{Y+1}]
v_pk_add_f32 v[{Y+2}:{Y+3}], v[{Y+2}:{Y+3}], v[{Y+4}:{Y+5}]
v_add_f32 v{R}, v{Y+2}, v{Y+3}""")
    xrow_reduce(a, "v_add_f32", R, TT)
    a(f"v_rcp_f32 v{R}, v{R}")
    for i in range(5): a(f"v_pk_mul_f32 v[{X+2*i}:{X+2*i+1}], v[{X+2*i}:{X+2*i+1}], v[{R}:{R+1}] op_sel_hi:[1,0]")
    for i in range(5): a(f"v_cvt_pk_bf16_f32 v{X+i}, v{X+2*i}, v{X+2*i+1}")
    a(f"""buffer_store_dwordx4 v[{X}:{X+3}], v2, {WSR}, s48 offen sc1
buffer_store_dword v{X+4}, v13, {WSR}, s47 offen sc1
s_waitcnt vmcnt(0)
RT_join:
s_lshl_b32 s46, s40, 8
s_add_u32 s46, s46, s45
s_barrier
buffer_store_dword v15, v14, {WSR}, s46 offen sc1
s_add_u32 s40, s40, {NT}
s_cmp_lt_u32 s40, 64
s_cbranch_scc1 RT_loop
s_endpgm""")

def flag_wait(a, tag, smask, voff, vdst, soff, sleep=4):
    a(f"""s_cmp_lg_u32 s26, 0
s_cbranch_scc1 {tag}_b
{tag}:
buffer_load_dword v{vdst}, v{voff}, {WSR}, {soff} offen sc1
s_waitcnt vmcnt(0)
v_cmp_eq_u32 vcc, 0, v{vdst}
s_and_b64 vcc, vcc, {smask}
s_cbranch_vccz {tag}_b
s_sleep {sleep}
s_branch {tag}
{tag}_b:
s_barrier""")

def role_F(a):
    ZF = 16; UF = 144; PF = 176
    a("R_F:")
    srd_load(a, "out", AUX); srd_fin(a, "out", AUX)
    a(f"""s_mul_i32 s28, s27, 37
s_lshr_b32 s28, s28, 8
s_mul_i32 s29, s28, 7
s_sub_u32 s29, s27, s29
s_lshr_b32 s30, s26, 1
s_lshl_b32 s31, s29, 1
s_add_u32 s30, s30, s31
s_and_b32 s32, s26, 1
v_lshlrev_b32 v5, 2, v1
v_lshrrev_b32 v10, 2, v1
v_lshlrev_b32 v10, 10, v10
v_and_b32 v11, 3, v1
v_lshl_add_u32 v10, v11, 2, v10
v_add_u32 v10, {OFF_ZF - OFF_FL}, v10
v_lshlrev_b32 v6, 2, v4
v_lshrrev_b32 v7, 2, v4
v_and_b32 v8, 3, v4
v_lshl_add_u32 v7, v7, 3, v8
s_lshl_b32 s33, s32, 2
v_add_u32 v7, s33, v7
v_mul_u32_u24 v7, 896, v7
v_lshl_add_u32 v7, v3, 4, v7
s_lshl_b32 s33, s30, 6
v_add_u32 v7, s33, v7
s_mov_b32 s50, 0x0000ffff
s_mov_b32 s51, 0x00010000
s_mov_b32 s52, 0xffff0000
s_lshl_b32 s53, 3, s31
s_mov_b32 s40, s28
s_mov_b32 s54, 0xffff0000
s_waitcnt lgkmcnt(0)""")
    a("RF_loop:")
    a(f"s_lshl_b32 s41, s40, 8\ns_add_u32 s41, s41, {hex(OFF_FL)}")
    a(f"""s_mul_i32 s33, s40, 240
v_subrev_u32 v11, s33, v10
v_cmp_gt_u32 vcc, 16, v1
v_cndmask_b32 v11, v5, v11, vcc""")
    flag_wait(a, "RF_w1", "s[50:51]", 11, 9, "s41", 16)
    a(f"""s_mul_i32 s42, s40, {16*28}
s_lshl_b32 s33, s30, 1
s_add_u32 s42, s42, s33
s_lshl_b32 s42, s42, 10
s_add_u32 s42, s42, {hex(OFF_Z)}""")
    for h in range(16):
        for c in range(2):
            b = ZF + (h*2+c)*4
            a(f"buffer_load_dwordx4 v[{b}:{b+3}], v2, {WSR}, s42 offen offset:{c*1024} sc1")
        if h < 15: a(f"s_add_u32 s42, s42, {28*1024}")
    a(f"""s_lshl_b32 s43, s40, 1
s_add_u32 s43, s43, s32
s_lshl_b32 s44, s43, 6
s_add_u32 s44, s44, {hex(OFF_OMG)}
s_mul_i32 s43, s43, 14
s_add_u32 s43, s43, s30
s_lshl_b32 s43, s43, 10
s_add_u32 s43, s43, {hex(OFF_GA)}
buffer_load_dwordx4 v[{PF}:{PF+3}], v2, {WSR}, s43 offen sc1
buffer_load_dword v{PF+4}, v6, {WSR}, s44 offen sc1""")
    flag_wait(a, "RF_w2", "s[52:53]", 5, 9, "s41", 2)
    a(f"""s_mul_i32 s45, s40, 40960
s_lshl_b32 s33, s32, 10
s_add_u32 s45, s45, s33
s_add_u32 s45, s45, {hex(OFF_PT)}
s_mul_i32 s46, s40, {4*28}
s_lshl_b32 s33, s30, 1
s_add_u32 s46, s46, s33
s_lshl_b32 s46, s46, 10
s_add_u32 s46, s46, {hex(OFF_U)}""")
    for h in range(20):
        d = 4*h
        a(f"buffer_load_dwordx4 a[{d}:{d+3}], v2, {WSR}, s45 offen offset:{(h & 1)*2048} sc1")
        if h & 1: a("s_add_u32 s45, s45, 4096")
    for hg in range(4):
        for c in range(2):
            b = UF + (hg*2+c)*4
            a(f"buffer_load_dwordx4 v[{b}:{b+3}], v2, {WSR}, s46 offen offset:{c*1024} sc1")
        if hg < 3: a(f"s_add_u32 s46, s46, {28*1024}")
    A0 = PF + 8
    for h in range(20):
        if h < 16: a(f"s_waitcnt vmcnt({27-h})")
        elif h == 16: a("s_waitcnt vmcnt(0)")
        for c in range(2):
            b = ZF + (h*2+c)*4 if h < 16 else UF + ((h-16)*2+c)*4
            d = A0 + 4*c
            a(f"v_mfma_f32_16x16x32_bf16 v[{d}:{d+3}], v[{b}:{b+3}], a[{4*h}:{4*h+3}], {'0' if h == 0 else f'v[{d}:{d+3}]'}")
    T0 = A0 + 8
    a(f"s_mul_i32 s47, s40, {32*896}")
    for i in range(4):
        a(f"""v_cvt_pk_bf16_f32 v{T0}, v{A0+2*i}, v{A0+2*i+1}
v_lshlrev_b32 v{T0+2}, 16, v{T0}
v_and_b32 v{T0+3}, s54, v{T0}
v_mul_f32 v{T0+2}, v{T0+2}, v{PF+4}
v_mul_f32 v{T0+3}, v{T0+3}, v{PF+4}
v_cvt_pk_bf16_f32 v{T0}, v{T0+2}, v{T0+3}
v_lshlrev_b32 v{T0+2}, 16, v{T0}
v_and_b32 v{T0+3}, s54, v{T0}
v_lshlrev_b32 v{T0+4}, 16, v{PF+i}
v_and_b32 v{T0+5}, s54, v{PF+i}
v_add_f32 v{T0+2}, v{T0+2}, v{T0+4}
v_add_f32 v{T0+3}, v{T0+3}, v{T0+5}
v_cvt_pk_bf16_f32 v{PF+i}, v{T0+2}, v{T0+3}""")
    a(f"""buffer_store_dwordx4 v[{PF}:{PF+3}], v7, {AUXR}, s47 offen
s_add_u32 s40, s40, 9
s_cmp_lt_u32 s40, 64
s_cbranch_scc1 RF_loop
s_endpgm""")

def role_L(a):
    from k1 import VM
    DB = 16; DBR = f"s[{DB}:{DB+3}]"
    ACCL = 16; PK = 32; VF = 40; KVA = 48; PQ = 64; TM = 96; G = 120; CI = 124
    xf = lambda t, ks: f"a[{(t*14+ks)*4}:{(t*14+ks)*4+3}]"
    def wb(j, blk):
        b = 4*blk
        return f"a[{112+b}:{115+b}]" if j % 2 == 0 else f"v[{128+b}:{131+b}]"
    al = lambda tt, t: ACCL + (tt*2+t)*4
    a("R_L:")
    srd_load(a, "gw", AUX); srd_fin(a, "gw", AUX); srd_load(a, "dbg", DB); srd_fin(a, "dbg", DB)
    a(f"""s_mul_i32 s40, s27, {XB}
s_add_u32 s40, s40, {hex(OFF_XN)}
s_mul_i32 s41, s26, {12*28*1024}
s_add_u32 s41, s41, {hex(OFF_WL)}
v_lshlrev_b32 v5, 4, v3
v_lshlrev_b32 v6, 2, v1
v_cmp_eq_u32 vcc, 12, v4
v_cndmask_b32 v{CI}, 0, 1.0, vcc
v_cndmask_b32 v{CI+1}, 0, 1.0, vcc
v_cndmask_b32 v{CI+2}, 0, 1.0, vcc
v_cndmask_b32 v{CI+3}, 0, 1.0, vcc
v_cmp_gt_u32 vcc, 3, v3
v_cndmask_b32 v7, 0, -1, vcc
s_mov_b32 s50, {f32(LOG2E)}
s_mov_b32 s51, {f32(LOG2E)}
s_mov_b32 s52, {f32(1e-6)}
s_mov_b32 s53, {f32(1e-6)}
s_mov_b32 s54, 0xffff0000
s_lshl_b32 s42, s26, 14
s_add_u32 s42, s42, {hex(OFF_KV)}
s_waitcnt lgkmcnt(0)""")
    vm = VM(a)
    for i in range(28):
        vm.op(f"buffer_load_dwordx4 a[{4*i}:{4*i+3}], v2, {WSR}, s40 offen offset:{(i%4)*1024}", "x" if i == 27 else None)
        if i % 4 == 3: a("s_add_u32 s40, s40, 4096")
    for ks in range(14):
        vm.op(f"buffer_load_dwordx4 v[{PQ+4*ks}:{PQ+4*ks+3}], v5, {AUXR}, 0 offen offset:{64*ks}", "gw" if ks == 13 else None)
    def wload(j, blk):
        vm.op(f"buffer_load_dwordx4 {wb(j, blk)}, v2, {WSR}, s41 offen offset:{(blk%4)*1024}", ("w", j, blk))
        if blk % 4 == 3: a("s_add_u32 s41, s41, 4096")
    for blk in range(28): wload(0, blk)
    vm.wait("gw")
    for ks in range(14):
        for t in range(2):
            d = ACCL + 4*t
            a(f"v_mfma_f32_16x16x32_bf16 v[{d}:{d+3}], v[{PQ+4*ks}:{PQ+4*ks+3}], {xf(t, ks)}, {'0' if ks == 0 else f'v[{d}:{d+3}]'}")
    for blk in range(28): wload(1, blk)
    a(f"""v_cvt_pk_bf16_f32 v{TM}, v{ACCL}, v{ACCL+4}
v_lshlrev_b32 v{G}, 16, v{TM}
v_and_b32 v{G+1}, s54, v{TM}
v_pk_mul_f32 v[{G}:{G+1}], v[{G}:{G+1}], s[50:51] neg_lo:[1,0] neg_hi:[1,0]
v_exp_f32 v{G}, v{G}
v_exp_f32 v{G+1}, v{G+1}
v_pk_add_f32 v[{G}:{G+1}], v[{G}:{G+1}], 1.0 op_sel_hi:[1,0]
v_rcp_f32 v{G}, v{G}
v_rcp_f32 v{G+1}, v{G+1}
v_cvt_pk_bf16_f32 v{TM}, v{G}, v{G+1}
v_lshlrev_b32 v{G}, 16, v{TM}
v_and_b32 v{G+1}, s54, v{TM}
v_sub_f32 v{TM}, 1.0, v{G}
v_sub_f32 v{TM+1}, 1.0, v{G+1}
v_cvt_pk_bf16_f32 v{TM}, v{TM}, v{TM+1}
v_lshlrev_b32 v{G+2}, 16, v{TM}
v_and_b32 v{G+3}, s54, v{TM}
v_mov_b32 v{TM}, {hex(OOB)}
v_cmp_gt_u32 vcc, 16, v0
v_cndmask_b32 v8, v{TM}, v6, vcc
v_cmp_eq_u32 vcc, 0, v0
v_cndmask_b32 v9, v{TM}, 0, vcc
s_lshl_b32 s43, s27, 7
s_add_u32 s43, s43, {hex(OFF_OMG)}""")
    vm.op(f"buffer_store_dword v{G+2}, v8, {WSR}, s43 offen sc1")
    vm.op(f"buffer_store_dword v{G+3}, v8, {WSR}, s43 offen offset:64 sc1")
    def phi(dst, x0):
        a(f"""v_cvt_pk_bf16_f32 v{TM}, v{x0}, v{x0+1}
v_lshlrev_b32 v{TM+2}, 16, v{TM}
v_and_b32 v{TM+3}, s54, v{TM}
v_pk_mul_f32 v[{TM+4}:{TM+5}], v[{TM+2}:{TM+3}], s[50:51]
v_max_f32 v{TM+2}, 0, v{TM+2}
v_min_f32 v{TM+4}, 0, v{TM+4}
v_min_f32 v{TM+5}, 0, v{TM+5}
v_exp_f32 v{TM+4}, v{TM+4}
v_exp_f32 v{TM+5}, v{TM+5}
v_max_f32 v{TM+3}, 0, v{TM+3}
v_pk_add_f32 v[{TM+2}:{TM+3}], v[{TM+2}:{TM+3}], v[{TM+4}:{TM+5}]
v_pk_add_f32 v[{TM+2}:{TM+3}], v[{TM+2}:{TM+3}], s[52:53]
v_cvt_pk_bf16_f32 v{dst}, v{TM+2}, v{TM+3}""")
    for j in range(12):
        hl, part = divmod(j, 3)
        for blk in range(28):
            tt, ks = divmod(blk, 14)
            vm.wait(("w", j, blk))
            for t in range(2):
                d = al(tt, t)
                c = f"v[{d}:{d+3}]" if ks else (f"v[{CI}:{CI+3}]" if (part == 2 and tt == 1) else "0")
                A, B = (wb(j, blk), xf(t, ks)) if part == 0 else (xf(t, ks), wb(j, blk))
                a(f"v_mfma_f32_16x16x32_bf16 v[{d}:{d+3}], {A}, {B}, {c}")
            if j + 2 < 12: wload(j+2, blk)
        for tt in range(2):
            for t in range(2):
                for k in range(2):
                    src = al(tt, t) + 2*k
                    if part == 0: phi(PQ + (hl*2+t)*4 + 2*tt + k, src)
                    elif part == 1: phi(PK + 4*tt + 2*t + k, src)
                    else: a(f"v_cvt_pk_bf16_f32 v{VF + 4*tt + 2*t + k}, v{src}, v{src+1}")
        if part == 2:
            for td in range(2):
                for te in range(2):
                    d = KVA + (td*2+te)*4
                    a(f"v_mfma_f32_16x16x32_bf16 v[{d}:{d+3}], v[{PK+4*td}:{PK+4*td+3}], v[{VF+4*te}:{VF+4*te+3}], 0")
            for i in range(16):
                vm.op(f"buffer_atomic_add_f32 v{KVA+i}, v6, {WSR}, s42 offen offset:{i*256}")
            a("s_add_u32 s42, s42, 4096")
    wo = lambda slot, h: (f"a[{128+64*slot+4*h}:{131+64*slot+4*h}]" if slot < 2 else f"v[{192+4*h}:{195+4*h}]")
    a(f"""s_mul_i32 s41, s26, {7*16*1024}
s_add_u32 s41, s41, {hex(OFF_WO)}
s_waitcnt vmcnt(0)
s_barrier
s_cmp_lg_u32 s26, 0
s_cbranch_scc1 RL_noadd
v_mov_b32 v{TM}, 1
buffer_atomic_add v{TM}, v9, {DBR}, 0 offen offset:8 sc1
RL_noadd:""")
    vm = VM(a)
    def woload(c):
        for h in range(16):
            vm.op(f"buffer_load_dwordx4 {wo(c % 3, h)}, v2, {WSR}, s41 offen offset:{(h%4)*1024}", ("wo", c, h))
            if h % 4 == 3: a("s_add_u32 s41, s41, 4096")
    for c in range(3): woload(c)
    a(f"""s_cmp_lg_u32 s26, 0
s_cbranch_scc1 RL_sync
v_mov_b32 v{TM+1}, 0
RL_spin:
buffer_load_dword v{TM}, v{TM+1}, {DBR}, 0 offen offset:8 sc1
s_waitcnt vmcnt(0)
v_readfirstlane_b32 s33, v{TM}
s_cmp_ge_u32 s33, 64
s_cbranch_scc1 RL_sync
s_sleep 8
s_branch RL_spin
RL_sync:
s_barrier
s_sub_u32 s42, s42, 16384""")
    KR = 128
    for hl in range(4):
        for i in range(16):
            vm.op(f"buffer_load_dword v{KR+16*hl+i}, v6, {WSR}, s42 offen offset:{i*256} sc1", ("kv", hl) if i == 15 else None)
        a("s_add_u32 s42, s42, 4096")
    a(f"s_lshl_b32 s33, s26, 13\nv_add_u32 v10, s33, v2")
    KF = 32; ZF = 40; N0 = 16
    for hl in range(4):
        vm.wait(("kv", hl))
        k = lambda td, te, r: KR + 16*hl + (td*2+te)*4 + r
        for te in range(2):
            for td in range(2):
                for e in range(2):
                    a(f"v_cvt_pk_bf16_f32 v{KF+4*te+2*td+e}, v{k(td,te,2*e)}, v{k(td,te,2*e+1)}")
            a(f"v_and_b32 v{KF+4*te+2}, v7, v{KF+4*te+2}\nv_and_b32 v{KF+4*te+3}, v7, v{KF+4*te+3}")
        for i in range(4): a(f"v_mov_b32_dpp v{ZF+i}, v{KF+4+i} row_newbcast:12 {DPM}")
        for t in range(2):
            pq = f"v[{PQ+(hl*2+t)*4}:{PQ+(hl*2+t)*4+3}]"
            a(f"""v_mfma_f32_16x16x32_bf16 v[{N0+8}:{N0+11}], v[{ZF}:{ZF+3}], {pq}, 0
v_mfma_f32_16x16x32_bf16 v[{N0}:{N0+3}], v[{KF}:{KF+3}], {pq}, 0
v_mfma_f32_16x16x32_bf16 v[{N0+4}:{N0+7}], v[{KF+4}:{KF+7}], {pq}, 0
v_cvt_pk_bf16_f32 v{TM}, v{N0+8}, v{N0+8}
v_lshlrev_b32 v{TM}, 16, v{TM}
v_add_f32 v{TM}, s52, v{TM}
v_cvt_pk_bf16_f32 v{TM}, v{TM}, v{TM}
v_lshlrev_b32 v{TM}, 16, v{TM}
v_rcp_f32 v{TM}, v{TM}""")
            for i in range(4):
                a(f"""v_cvt_pk_bf16_f32 v{TM+4}, v{N0+2*i}, v{N0+2*i+1}
v_lshlrev_b32 v{TM+2}, 16, v{TM+4}
v_and_b32 v{TM+3}, s54, v{TM+4}
v_pk_mul_f32 v[{TM+2}:{TM+3}], v[{TM+2}:{TM+3}], v[{TM}:{TM+1}] op_sel_hi:[1,0]
v_cvt_pk_bf16_f32 v{44+i}, v{TM+2}, v{TM+3}""")
            a(f"ds_write_b128 v10, v[44:47] offset:{(hl*2+t)*1024}")
    a("s_waitcnt lgkmcnt(0)\ns_barrier")
    for i in range(32):
        a(f"ds_read_b128 a[{4*i}:{4*i+3}], v2 offset:{i*1024}")
        if i % 8 == 7: a("s_waitcnt lgkmcnt(0)")
    a(f"s_mul_i32 s44, s26, 7\ns_mul_i32 s45, s27, {28*1024}\ns_add_u32 s45, s45, {hex(OFF_GA)}")
    for c in range(7):
        for h in range(16):
            vm.wait(("wo", c, h))
            for t in range(2):
                d = ACCL + 4*t
                a(f"v_mfma_f32_16x16x32_bf16 v[{d}:{d+3}], {wo(c % 3, h)}, a[{(h*2+t)*4}:{(h*2+t)*4+3}], {'0' if h == 0 else f'v[{d}:{d+3}]'}")
        if c + 3 < 7: woload(c+3)
        a(f"""s_add_u32 s33, s44, {c}
s_lshr_b32 s46, s33, 1
s_lshl_b32 s46, s46, 10
s_and_b32 s33, s33, 1
s_lshl_b32 s33, s33, 3
s_add_u32 s46, s46, s33
s_add_u32 s46, s46, s45
s_add_u32 s47, s46, {14*1024}""")
        for t in range(2):
            o = 32 + 2*t + 4*(c & 1)
            for i in range(2):
                a(f"""v_cvt_pk_bf16_f32 v{TM+4}, v{ACCL+4*t+2*i}, v{ACCL+4*t+2*i+1}
v_lshlrev_b32 v{TM+2}, 16, v{TM+4}
v_and_b32 v{TM+3}, s54, v{TM+4}
v_mul_f32 v{TM+2}, v{TM+2}, v{G+t}
v_mul_f32 v{TM+3}, v{TM+3}, v{G+t}
v_cvt_pk_bf16_f32 v{o+i}, v{TM+2}, v{TM+3}""")
            vm.op(f"buffer_store_dwordx2 v[{o}:{o+1}], v2, {WSR}, s{46+t} offen sc1")
    a(f"""s_lshl_b32 s46, s27, 8
s_add_u32 s46, s46, {hex(OFF_FL + FL_G*4)}
v_mov_b32 v{TM}, 1
s_waitcnt vmcnt(0)
s_barrier
buffer_store_dword v{TM}, v9, {WSR}, s46 offen sc1
s_endpgm""")
```

```python
from gen_common import *

class VM:
    def __init__(self, a): self.a = a; self.n = 0; self.tags = {}
    def op(self, text, tag=None):
        self.a(text); self.n += 1
        if tag is not None: self.tags[tag] = self.n
    def wait(self, tag):
        k = min(self.n - self.tags[tag], 63)
        self.a(f"s_waitcnt vmcnt({k})")

LOG2E = 1.4426950408889634
import struct
def f32(x): return hex(struct.unpack("<I", struct.pack("<f", x))[0])

import os
OPT = dict(x.split('=') for x in os.environ.get('OPT','').split(',') if x)
def k1_body(a, prof=False):
    WS, X, SA, SB, M0 = 4, 8, 12, 16, 20
    first = len(a.lines)
    srd_load(a, "mem0", M0)
    a("""v_and_b32 v2, 63, v0
v_lshlrev_b32 v3, 4, v0
v_lshlrev_b32 v4, 4, v2
v_lshrrev_b32 v5, 4, v2
v_and_b32 v6, 15, v2""")
    srd_fin(a, "mem0", M0)
    a("s_waitcnt lgkmcnt(0)")
    a(f"""s_cmp_ge_u32 s3, 208
s_cbranch_scc1 K1_nofill
s_cmp_eq_u32 s3, 0
s_cbranch_scc1 K1_filled
s_cmp_eq_u32 s3, 64
s_cbranch_scc1 K1_filled
v_mov_b32 v8, -1
v_mov_b32 v9, -1
v_mov_b32 v10, -1
v_mov_b32 v11, -1
s_lshl_b32 s27, s3, 13
s_add_u32 s27, s27, {hex(OFF_MF)}
s_add_u32 s28, s27, 4096
buffer_store_dwordx4 v[8:11], v3, s[{WS}:{WS+3}], s27 offen
buffer_store_dwordx4 v[8:11], v3, s[{WS}:{WS+3}], s28 offen
s_branch K1_filled
K1_nofill:
s_cmp_ge_u32 s3, 232
s_cbranch_scc1 K1_nozero
v_mov_b32 v8, 0
v_mov_b32 v9, 0
v_mov_b32 v10, 0
v_mov_b32 v11, 0
s_sub_u32 s27, s3, 208
s_lshl_b32 s27, s27, 12
s_add_u32 s27, s27, {hex(OFF_FL)}
buffer_store_dwordx4 v[8:11], v3, s[{WS}:{WS+3}], s27 offen
s_branch K1_filled
K1_nozero:
s_cmp_ge_u32 s3, 234
s_cbranch_scc1 K1_filled
v_and_b32 v8, 7, v0
v_mul_u32_u24 v8, 896, v8
v_lshrrev_b32 v9, 3, v0
v_lshl_add_u32 v8, v9, 4, v8
buffer_load_dwordx4 v[12:15], v8, s[{M0}:{M0+3}], 0 offen
buffer_load_dwordx4 v[16:19], v8, s[{M0}:{M0+3}], 0 offen offset:512
s_sub_u32 s27, s3, 232
s_mul_i32 s27, s27, {hex(OFF_MX-OFF_MF)}
s_add_u32 s27, s27, {hex(OFF_MF)}
s_add_u32 s28, s27, 4096
s_waitcnt vmcnt(0)
buffer_store_dwordx4 v[12:15], v3, s[{WS}:{WS+3}], s27 offen
buffer_store_dwordx4 v[16:19], v3, s[{WS}:{WS+3}], s28 offen
K1_filled:""")
    a("""v_lshrrev_b32 v8, 2, v6
v_lshlrev_b32 v8, 3, v8
v_and_b32 v9, 3, v6
v_add_u32 v8, v8, v9
v_mul_u32_u24 v8, 896, v8
v_lshrrev_b32 v9, 1, v5
v_lshl_add_u32 v8, v9, 5, v8
v_and_b32 v9, 1, v5
v_lshl_add_u32 v20, v9, 3, v8
v_lshl_add_u32 v19, v9, 3, v20
s_lshr_b32 s27, s3, 2
s_lshl_b32 s27, s27, 5
s_bfe_u32 s28, s3, 0x10001
s_lshl_b32 s28, s28, 2
s_add_u32 s27, s27, s28
s_mul_i32 s27, s27, 896
s_and_b32 s28, s3, 1
s_mul_i32 s28, s28, 7
s_add_u32 s29, s28, s26
s_add_u32 s30, s26, 4
s_min_u32 s30, s30, 6
s_add_u32 s30, s28, s30
s_lshl_b32 s31, s29, 6
s_add_u32 s31, s31, s27
s_lshl_b32 s32, s30, 6
s_add_u32 s32, s32, s27
s_lshr_b32 s33, s3, 1
s_mul_i32 s33, s33, 14
s_add_u32 s29, s29, s33
s_add_u32 s30, s30, s33
s_lshl_b32 s29, s29, 10
s_lshl_b32 s30, s30, 10""")
    a(f"s_add_u32 s62, s29, {hex(OFF_XN)}\ns_add_u32 s63, s30, {hex(OFF_XN)}")
    a(f"s_add_u32 s29, s29, {hex(OFF_XP)}\ns_add_u32 s30, s30, {hex(OFF_XP)}")
    def xp_loads(vm):
        vm.op(f"buffer_load_dwordx4 v[24:27], v19, s[{X}:{X+3}], s31 offen")
        vm.op(f"buffer_load_dwordx4 v[28:31], v19, s[{X}:{X+3}], s32 offen", "xp")
    def xp_store(vm):
        vm.wait("xp")
        vm.op(f"buffer_store_dwordx4 v[24:27], v4, s[{WS}:{WS+3}], s62 offen")
        vm.op(f"buffer_store_dwordx4 v[28:31], v4, s[{WS}:{WS+3}], s63 offen")
        a("""v_permlane16_swap_b32 v24, v26
v_permlane16_swap_b32 v25, v27
v_permlane16_swap_b32 v28, v30
v_permlane16_swap_b32 v29, v31
v_swap_b32 v25, v26
v_swap_b32 v29, v30""")
        vm.op(f"buffer_store_dwordx4 v[24:27], v4, s[{WS}:{WS+3}], s29 offen")
        vm.op(f"buffer_store_dwordx4 v[28:31], v4, s[{WS}:{WS+3}], s30 offen")
    a("s_cmp_ge_u32 s3, 224\ns_cbranch_scc1 K1_misc")
    a("""s_mul_i32 s34, s3, 293
s_lshr_b32 s34, s34, 11
s_mul_i32 s35, s34, 7
s_sub_u32 s35, s3, s35
s_and_b32 s36, s34, 15""")
    a("""v_lshrrev_b32 v8, 5, v2
v_and_b32 v9, 31, v2
s_lshl_b32 s37, s36, 9""")
    for i in range(8):
        mrow = 16*((2*i) >> 3) + 8*(i & 1) + 4*((i >> 1) & 1); nrow = 8*(i >> 1) + 2*(i & 1)
        a(f"""v_or_b32 v10, {2*i}, v8
v_xor_b32 v10, v10, v9
v_lshlrev_b32 v10, 4, v10
v_lshl_add_u32 v10, v8, 13, v10
v_add_u32 v{64+i}, {mrow*8192}, v10
v_add_u32 v{72+i}, {nrow*8192}, v10""")
    a("v_lshlrev_b32 v11, 9, v6\ns_lshl_b32 s38, s26, 14")
    for es in range(8):
        a(f"""v_or_b32 v10, {4*es}, v5
v_xor_b32 v10, v10, v6
v_lshl_add_u32 v{80+es}, v10, 4, v11""")
    for i in range(4):
        a(f"""s_add_u32 s38, s26, {4*i}
s_min_u32 s38, s38, 13
s_lshl_b32 s{40+2*i}, s38, 18
s_add_u32 s{40+2*i}, s{40+2*i}, s37
s_add_u32 s{41+2*i}, s{40+2*i}, 16384""")
    a("s_lshl_b32 s48, s26, 14")
    LAND = lambda i, tt, j: (f"a[{128+((i-2)*16+tt*8+j)*4}:{131+((i-2)*16+tt*8+j)*4}]")
    def a_dma(vm, i, only=None):
        for tt in range(2):
            for j in range(8):
                if only is not None and (tt, j) != only: continue
                tag = ("A", i) if (tt, j) == (1, 7) else None
                if i < 2:
                    a(f"s_add_u32 m0, s48, {(i & 1)*65536 + tt*8192 + j*1024}")
                    vm.op(f"buffer_load_dwordx4 v{64+j}, s[{SA}:{SA+3}], s{40+2*i+tt} offen lds", tag)
                else:
                    vm.op(f"buffer_load_dwordx4 {LAND(i, tt, j)}, v{64+j}, s[{SA}:{SA+3}], s{40+2*i+tt} offen", tag)
    RG = 96
    def compute(vm, scale):
        for es in range(8): a(f"v_add_u32 v{80+es}, s48, v{80+es}")
        a("v_add_u32 v88, s48, v4")
        for i in range(4):
            if i == 3:
                a(f"s_cmp_ge_u32 s26, 2\ns_cbranch_scc1 M_join")
            if i < 2: vm.wait(("A", i))
            if prof: a(f"s_memrealtime s[{82+2*i}:{83+2*i}]")
            acc = 192 + 32*(i & 1)
            def rd(es):
                for tt in range(2):
                    b = RG + ((es & 3)*2 + tt)*4
                    a(f"ds_read_b128 v[{b}:{b+3}], v{80+es} offset:{tt*8192}")
            rd(0); rd(1); rd(2)
            for es in range(8):
                if es + 3 < 8: rd(es+3)
                nw = 4*max(0, es-4) if i in (1, 2) else 0
                a(f"s_waitcnt lgkmcnt({2*min(3, 7-es) + nw})")
                if i in (1, 2) and es == 4: vm.wait(("A", i+1))
                for tt in range(2):
                    b = RG + ((es & 3)*2 + tt)*4
                    for t in range(4):
                        d = acc + (tt*4+t)*4
                        c = "0" if es == 0 else f"v[{d}:{d+3}]"
                        a(f"v_mfma_f32_16x16x32_bf16 v[{d}:{d+3}], v[{b}:{b+3}], a[{(t*8+es)*4}:{(t*8+es)*4+3}], {c}")
                        if i in (1, 2) and es >= 4 and t & 1:
                            k = (es-4)*4 + tt*2 + (t >> 1)
                            a(f"ds_write_b128 v88, {LAND(i+1, k >> 3, k & 7)} offset:{(k >> 3)*8192 + (k & 7)*1024}")
                        if i == 0 and t & 1: a_dma(vm, 2 + (es >> 2), ((es >> 1) & 1, (es & 1)*4 + tt*2 + (t >> 1)))
            for es in range(8): a(f"v_xor_b32 v{80+es}, 0x10000, v{80+es}")
            a(f"s_add_u32 s50, s26, {4*i}\ns_lshl_b32 s50, s50, 10\ns_add_u32 s50, s50, s39")
            for t in range(4):
                o = 32 + 4*t
                for tt in range(2):
                    d = acc + (tt*4+t)*4
                    if scale:
                        a(f"v_pk_mul_f32 v[{d}:{d+1}], v[{d}:{d+1}], s[52:53]\nv_pk_mul_f32 v[{d+2}:{d+3}], v[{d+2}:{d+3}], s[52:53]")
                    a(f"v_cvt_pk_bf16_f32 v{o+2*tt}, v{d}, v{d+1}\nv_cvt_pk_bf16_f32 v{o+2*tt+1}, v{d+2}, v{d+3}")
                vm.op(f"buffer_store_dwordx4 v[{o}:{o+3}], v4, s[{WS}:{WS+3}], s50 offen")
                if t < 3: a(f"s_add_u32 s50, s50, {14*1024}")
            if i in (1, 2): a("v_xor_b32 v88, 0x10000, v88\ns_waitcnt lgkmcnt(0)")
        a("s_branch M_join")
    a(f"""s_mul_i32 s39, s34, 28
s_lshl_b32 s38, s35, 2
s_add_u32 s39, s39, s38
s_mul_i32 s39, s39, {14*1024}""")
    assert OFF_WA == 0 and OFF_WB == 16*WSZ
    a("s_cmp_ge_u32 s34, 16\ns_cbranch_scc1 K1_bmat")
    srd_load(a, "Wq", SA); srd_load(a, "Wk", SB); srd_fin(a, "Wq", SA); srd_fin(a, "Wk", SB)
    a(f"""s_lshl_b32 s54, s35, 19
s_add_u32 s54, s54, s37
s_lshr_b32 s55, s26, 1
s_lshl_b32 s55, s55, 18
s_add_u32 s54, s54, s55
s_and_b32 s55, s26, 1
s_lshl_b32 s55, s55, 15
s_add_u32 s54, s54, s55
s_lshl_b32 s55, s26, 13
s_mov_b32 s52, {f32(LOG2E/16)}
s_mov_b32 s53, {f32(LOG2E/16)}
s_waitcnt lgkmcnt(0)""")
    vm = VM(a)
    for j in range(8):
        a(f"s_add_u32 m0, s55, {131072 + j*1024}")
        vm.op(f"buffer_load_dwordx4 v{72+j}, s[{SB}:{SB+3}], s54 offen lds", "B" if j == 7 else None)
    a_dma(vm, 0); xp_loads(vm); a_dma(vm, 1)
    for es in range(8): a(f"v_add_u32 v{72+es}, 0x20000, v{80+es}")
    vm.wait("B"); a("s_barrier")
    for t in range(4):
        for es in range(8):
            b = (t*8+es)*4
            a(f"ds_read_b128 a[{b}:{b+3}], v{72+es} offset:{t*8192}")
        a("s_waitcnt lgkmcnt(0)")
    if prof: a("s_memrealtime s[80:81]")
    xp_store(vm)
    compute(vm, True)
    a("K1_bmat:")
    srd_load(a, "Wv", SA); srd_load(a, "Wo", SB); srd_fin(a, "Wv", SA); srd_fin(a, "Wo", SB)
    RS = 128
    a(f"""v_lshrrev_b32 v8, 3, v0
v_and_b32 v9, 7, v0
v_mul_u32_u24 v22, 896, v8
v_lshl_add_u32 v22, v9, 4, v22
v_lshlrev_b32 v10, 1, v8
v_and_b32 v10, 4, v10
v_xor_b32 v9, v9, v10
v_lshlrev_b32 v23, 7, v8
v_lshl_add_u32 v23, v9, 4, v23
v_add_u32 v23, 0x20000, v23
s_mul_i32 s54, s36, {256*896}
s_lshl_b32 s55, s35, 7
s_add_u32 s54, s54, s55
s_waitcnt lgkmcnt(0)""")
    vm = VM(a)
    for j in range(8):
        vm.op(f"buffer_load_dwordx4 v[{192+4*j}:{195+4*j}], v22, s[{SB}:{SB+3}], s54 offen", ("B", j))
        if j < 7: a(f"s_add_u32 s54, s54, {32*896}")
    a_dma(vm, 0); xp_loads(vm); a_dma(vm, 1)
    for j in range(8):
        vm.wait(("B", j))
        a(f"ds_write_b128 v23, v[{192+4*j}:{195+4*j}] offset:{j*32*RS}")
    a(f"""v_lshrrev_b32 v8, 2, v6
v_lshlrev_b32 v10, 1, v8
v_and_b32 v10, 4, v10
v_lshl_add_u32 v8, v5, 3, v8
v_lshlrev_b32 v8, 7, v8
v_and_b32 v9, 3, v6
v_or_b32 v9, v9, v10
v_lshl_add_u32 v23, v9, 4, v8
v_add_u32 v23, 0x20000, v23
v_xor_b32 v22, 64, v23
s_waitcnt lgkmcnt(0)
s_barrier""")
    for t in range(4):
        for es in range(8):
            b = (t*8+es)*4
            for hh in range(2):
                a(f"ds_read_b64_tr_b16 a[{b+2*hh}:{b+2*hh+1}], v{22 if t >> 1 else 23} offset:{(32*es+4*hh)*RS + 8*(t&1)}")
        a("s_waitcnt lgkmcnt(0)")
    if prof: a("s_memrealtime s[80:81]")
    xp_store(vm)
    compute(vm, False)
    a("K1_misc:")
    a("s_sub_u32 s34, s3, 224")
    a("""v_lshrrev_b32 v8, 2, v6
v_lshl_add_u32 v40, v5, 3, v8
v_and_b32 v41, 3, v6
s_cmp_ge_u32 s34, 28
s_cbranch_scc1 K1_wo""")
    srd_load(a, "wqkv", SB); srd_fin(a, "wqkv", SB)
    RL = 1360
    a(f"""s_lshr_b32 s35, s34, 1
s_and_b32 s36, s34, 1
s_lshl_b32 s37, s35, 5
s_lshl_b32 s38, s26, 3
s_add_u32 s37, s37, s38
s_mul_i32 s37, s37, 2688
s_mul_i32 s39, s36, 1344
s_add_u32 s37, s37, s39
s_mul_i32 s38, s38, {RL}
v_add_u32 v42, s38, v4
s_waitcnt lgkmcnt(0)""")
    vm = VM(a); xp_loads(vm)
    for rr in range(8):
        vm.op(f"buffer_load_dwordx4 v[{64+8*rr}:{67+8*rr}], v4, s[{SB}:{SB+3}], s37 offen")
        vm.op(f"buffer_load_dwordx4 v[{68+8*rr}:{71+8*rr}], v4, s[{SB}:{SB+3}], s37 offen offset:1024", ("R", rr))
        if rr < 7: a("s_add_u32 s37, s37, 2688")
    xp_store(vm)
    a("v_cmp_gt_u32 vcc, 20, v2\ns_mov_b64 s[60:61], vcc")
    for rr in range(8):
        vm.wait(("R", rr))
        a(f"ds_write_b128 v42, v[{64+8*rr}:{67+8*rr}] offset:{rr*RL}")
        a("s_mov_b64 exec, s[60:61]")
        a(f"ds_write_b128 v42, v[{68+8*rr}:{71+8*rr}] offset:{rr*RL+1024}")
        a("s_mov_b64 exec, -1")
    a(f"""v_mul_u32_u24 v43, {RL}, v40
v_lshl_add_u32 v43, v41, 4, v43
s_mul_i32 s38, s26, {6*56}
v_add_u32 v43, s38, v43
v_cmp_gt_u32 vcc, 12, v6
v_cndmask_b32 v44, 0, -1, vcc
s_mul_i32 s40, s36, 24
s_mul_i32 s41, s26, 6
s_add_u32 s40, s40, s41
s_waitcnt lgkmcnt(0)
s_barrier""")
    for j in range(6):
        for tile in range(2):
            o = 64 + (j*2+tile)*4
            for hh in range(2):
                a(f"ds_read_b64_tr_b16 v[{o+2*hh}:{o+2*hh+1}], v43 offset:{4*hh*RL + j*56 + 8*tile}")
    a("s_waitcnt lgkmcnt(0)")
    for j in range(6):
        a(f"""s_add_u32 s41, s40, {j}
s_and_b32 s42, s41, 15
s_lshr_b32 s41, s41, 4
s_mul_i32 s42, s42, 3
s_add_u32 s41, s41, s42
s_mul_i32 s41, s41, 28
s_add_u32 s41, s41, s35
s_lshl_b32 s41, s41, 10
s_add_u32 s41, s41, {hex(OFF_WL)}
s_add_u32 s42, s41, {14*1024}""")
        o = 64 + j*8
        for k in range(4): a(f"v_and_b32 v{o+4+k}, v{o+4+k}, v44")
        a(f"buffer_store_dwordx4 v[{o}:{o+3}], v4, s[{WS}:{WS+3}], s41 offen")
        a(f"buffer_store_dwordx4 v[{o+4}:{o+7}], v4, s[{WS}:{WS+3}], s42 offen")
    a("s_branch M_join")
    a("K1_wo:")
    srd_load(a, "wo", SB); srd_fin(a, "wo", SB)
    RO = 912
    a(f"""s_sub_u32 s35, s34, 28
s_lshl_b32 s35, s35, 2
s_add_u32 s35, s35, s26
s_mul_i32 s37, s35, {28*896}
s_mul_i32 s38, s26, {32*RO}
v_add_u32 v42, s38, v4
s_waitcnt lgkmcnt(0)""")
    vm = VM(a); xp_loads(vm)
    for rr in range(28):
        imm = (rr % 4) * 896
        vm.op(f"buffer_load_dwordx4 v[{64+4*rr}:{67+4*rr}], v4, s[{SB}:{SB+3}], s37 offen offset:{imm}", ("R", rr))
        if rr % 4 == 3: a(f"s_add_u32 s37, s37, {4*896}")
    xp_store(vm)
    a("v_cmp_gt_u32 vcc, 56, v2\ns_and_saveexec_b64 s[60:61], vcc")
    for rr in range(28):
        vm.wait(("R", rr))
        a(f"ds_write_b128 v42, v[{64+4*rr}:{67+4*rr}] offset:{rr*RO}")
    a(f"""s_mov_b64 exec, s[60:61]
v_mul_u32_u24 v43, {RO}, v40
v_lshl_add_u32 v43, v41, 4, v43
v_add_u32 v43, s38, v43
v_cmp_gt_u32 vcc, 3, v5
v_cndmask_b32 v44, 0, -1, vcc
s_lshl_b32 s41, s35, 10
s_add_u32 s41, s41, {hex(OFF_WO)}
s_waitcnt lgkmcnt(0)""")
    for ct in range(28):
        o = 64 + 4*ct
        for hh in range(2):
            a(f"ds_read_b64_tr_b16 v[{o+2*hh}:{o+2*hh+1}], v43 offset:{4*hh*RO + (32*(ct>>1)+4*(ct&1))*2}")
        if ct % 7 == 6: a("s_waitcnt lgkmcnt(0)")
    for ct in range(28):
        o = 64 + 4*ct
        a(f"v_and_b32 v{o+2}, v{o+2}, v44\nv_and_b32 v{o+3}, v{o+3}, v44")
        a(f"buffer_store_dwordx4 v[{o}:{o+3}], v4, s[{WS}:{WS+3}], s41 offen")
        a(f"s_add_u32 s41, s41, {16*1024}")
    for k in range(first, len(a.lines)):
        l = a.lines[k]
        if l.startswith("buffer_load") and "s[4:7]" not in l and OPT.get("k1ld", "nt") != "0":
            l = l[:-4] + " " + OPT.get("k1ld", "nt") + " lds" if l.endswith(" lds") else l + " " + OPT.get("k1ld", "nt")
        if l.startswith("buffer_store"): l += " sc1"
        a.lines[k] = l
```

```python
from main_roles import *
import team, asmlib, k1
MAIN_LDS = 160*1024
def gen_main(name, roles, force=None, prof=False):
    a = Asm(); header(a, name)
    a("s_cmp_ge_u32 s2, 256\ns_cbranch_scc1 M_end")
    srd_load(a, "ws", WS); srd_load(a, "x", X)
    if prof: a("s_memrealtime s[98:99]")
    a("s_and_b32 s24, s2, 7\ns_lshr_b32 s25, s2, 3")
    lane_consts(a)
    srd_fin(a, "ws", WS); srd_fin(a, "x", X)
    a("""s_sub_u32 s3, s24, 1
s_and_b32 s3, s3, 7
s_lshl_b32 s3, s3, 5
s_add_u32 s3, s3, s25
s_waitcnt lgkmcnt(0)""")
    k1.k1_body(a, prof == 5)
    a("M_join:")
    if prof: a("s_memrealtime s[92:93]")
    srd_load(a, "dbg", AUX); srd_fin(a, "dbg", AUX)
    lane_consts(a)
    a(f"""v_and_b32 v5, 7, v1
v_lshlrev_b32 v5, 4, v5
s_lshl_b32 s27, s24, 4
s_waitcnt vmcnt(0) lgkmcnt(0)
s_barrier
s_cmp_lg_u32 s26, 0
s_cbranch_scc1 M_wait
v_mov_b32 v6, 1
s_mov_b64 exec, 1
buffer_atomic_add v6, off, {AUXR}, s27 offset:128 sc1
s_mov_b64 exec, -1
M_spin:
buffer_load_dword v6, v5, {AUXR}, 0 offen offset:128 sc1
s_waitcnt vmcnt(0)
v_cmp_gt_u32 vcc, 32, v6
s_cbranch_vccz M_wait
s_sleep 2
s_branch M_spin
M_wait:
s_barrier""")
    if prof: a("s_memrealtime s[90:91]")
    tgt = lambda r: f"R_{r}" if r in roles else "M_end"
    a(f"""s_waitcnt lgkmcnt(0)
s_cmp_lg_u32 s24, 0
s_cbranch_scc1 M_worker
s_mov_b32 s27, s25
s_cmp_lt_u32 s25, 16
s_cbranch_scc1 {tgt('A')}
s_sub_u32 s27, s25, 16
s_cmp_lt_u32 s25, 30
s_cbranch_scc1 {tgt('B')}
s_branch {tgt('H')}
M_worker:
s_cmp_eq_u32 s24, 7
s_cbranch_scc0 M_w1
s_add_u32 s27, s25, 32
s_cmp_lt_u32 s27, 63
s_cbranch_scc1 {tgt('F')}
s_endpgm
M_w1:
s_cmp_lt_u32 s24, 5
s_cbranch_scc1 M_w2
s_sub_u32 s27, s24, 5
s_lshl_b32 s27, s27, 5
s_add_u32 s27, s27, s25
s_branch {tgt('L')}
M_w2:
s_sub_u32 s29, s24, 1
s_cmp_lt_u32 s25, 24
s_cbranch_scc1 M_w3
s_lshl_b32 s27, s29, 3
s_add_u32 s27, s27, s25
s_sub_u32 s27, s27, 24
s_branch {tgt('F')}
M_w3:
s_sub_u32 s30, s25, 12
s_cmp_lt_u32 s25, 12
s_cselect_b32 s30, s25, s30
s_mul_i32 s31, s30, 43
s_lshr_b32 s31, s31, 7
s_mul_i32 s28, s31, 3
s_sub_u32 s28, s30, s28
s_lshl_b32 s27, s29, 2
s_add_u32 s27, s27, s31
s_cmp_lt_u32 s25, 12
s_cbranch_scc1 {tgt('Z')}
s_branch {tgt('T')}
M_end:
s_endpgm""")
    if "A" in roles: team.role_A(a, force, prof)
    if "B" in roles: team.role_B(a, force, prof)
    if "H" in roles: team.role_H(a)
    if "Z" in roles: role_Z(a)
    if "T" in roles:
        import workers; workers.role_T(a)
    if "L" in roles:
        import workers; workers.role_L(a)
    if "F" in roles:
        import workers; workers.role_F(a)
    if prof:
        L = []
        for l in a.lines:
            if l == "s_endpgm" and L and L[-1] != "M_end:":
                L += ["s_memrealtime s[96:97]", "s_lshl_b32 s95, s2, 4", "s_add_u32 s95, s95, 0x4100000", "s_waitcnt lgkmcnt(0)",
                      "v_mov_b32 v16, s98", "v_mov_b32 v17, s96", "v_mov_b32 v18, s92", "v_mov_b32 v19, s90", "s_mov_b64 exec, 1",
                      f"buffer_store_dwordx4 v[16:19], off, {WSR}, s95"]
            L.append(l)
        a.lines = L
    j0 = a.lines.index("M_wait:")
    for k in range(j0, len(a.lines)):
        l = a.lines[k]
        if l.startswith("buffer_load") and WSR in l and " sc1" not in l:
            a.lines[k] = l[:-4] + " sc1 lds" if l.endswith(" lds") else l + " sc1"
    asmlib.MFMA_STATES = 3
    txt = a.finish()
    asmlib.MFMA_STATES = 1
    import re
    txt = re.sub(r"\b(M_\w+|K1_\w+|R_\w+|R[ABHZTLF]_\w+)\b", lambda m: f"{name}_{m.group(1)}", txt)
    return txt + kd(name, 512, 256)
```

```python
import re

MFMA_STATES = 1
TRANS = ("v_exp_f32", "v_log_f32", "v_rcp_f32", "v_rsq_f32", "v_sqrt_f32", "v_sin_f32", "v_cos_f32")
_reg = re.compile(r"^(-|abs\()?([vas])(?:\[(\d+):(\d+)\]|(\d+))\)?$")

def regs(tok):
    tok = tok.strip()
    if tok in ("vcc", "exec"):
        return {tok + "_lo", tok + "_hi"}
    if tok in ("vcc_lo", "vcc_hi", "exec_lo", "exec_hi", "m0"):
        return {tok}
    m = _reg.match(tok)
    if not m:
        return set()
    k = m.group(2)
    if m.group(3) is not None:
        return {f"{k}{i}" for i in range(int(m.group(3)), int(m.group(4)) + 1)}
    return {f"{k}{m.group(5)}"}

class Ins:
    __slots__ = ("text", "op", "ops", "mods", "w", "r", "cls", "label", "target", "srcc", "ab", "passes", "dpp", "stdata", "states")
    def __init__(self, text):
        self.text = text
        self.label = None; self.target = None
        self.w = set(); self.r = set(); self.srcc = set(); self.ab = set(); self.stdata = set()
        self.passes = 0; self.dpp = False; self.cls = "other"; self.states = 1
        t = text.split(";")[0].strip()
        if t.endswith(":"):
            self.label = t[:-1]; self.cls = "label"; self.op = ""; self.states = 0; return
        if t.startswith(".") or not t:
            self.cls = "dir"; self.op = ""; self.states = 0; return
        parts = t.split(None, 1)
        op = parts[0]; self.op = op
        rest = parts[1] if len(parts) > 1 else ""
        toks = [x.strip() for x in rest.split(",")]
        ops = []; mods = []
        for i, x in enumerate(toks):
            sub = x.split()
            if not sub: continue
            ops.append(sub[0]); mods += sub[1:]
        self.ops = ops; self.mods = mods
        R = [regs(x) for x in ops]
        allr = lambda lst: set().union(*lst) if lst else set()
        if op.startswith("v_mfma") or op.startswith("v_smfmac"):
            self.cls = "mfma"; self.passes = 8 if "32x32" in op else 4
            self.states = 1 if MFMA_STATES == 1 else (3 if op.startswith('v_smfmac') else 2)
            self.w = R[0]; self.ab = R[1] | R[2]
            if op.startswith("v_smfmac"):
                self.srcc = R[0]; self.ab |= R[3]
            else:
                self.srcc = R[3]
            self.r = self.ab | self.srcc
        elif op.startswith("v_"):
            self.cls = "valu"
            self.dpp = ("_dpp" in op) or any(m.startswith(("row_", "quad_perm", "wave_")) for m in mods)
            base = op.replace("_e32", "").replace("_e64", "").replace("_dpp", "").replace("_sdwa", "")
            if base.startswith("v_cmp"):
                self.w = R[0]; self.r = allr(R[1:])
                if base.startswith("v_cmpx"): self.w |= regs("exec")
            elif base in ("v_swap_b32", "v_permlane32_swap_b32", "v_permlane16_swap_b32"):
                self.w = R[0] | R[1]; self.r = R[0] | R[1]
            elif base in ("v_add_co_u32", "v_sub_co_u32", "v_addc_co_u32", "v_subb_co_u32"):
                self.w = R[0] | R[1]; self.r = allr(R[2:])
            else:
                self.w = R[0]; self.r = allr(R[1:])
                if base in ("v_fmac_f32", "v_dot2c_f32_bf16", "v_pk_fmac_f16", "v_writelane_b32") or self.dpp:
                    self.r |= R[0]
        elif op.startswith(("buffer_", "global_")):
            self.cls = "vmem"
            if op in ("buffer_wbl2", "buffer_inv"):
                pass
            elif "load" in op:
                if "lds" in mods or "_lds_" in op:
                    self.r = allr(R) | {"m0"}; self.cls = "vmem_lds"
                else:
                    self.w = R[0]; self.r = allr(R[1:])
            elif "atomic" in op:
                self.r = allr(R)
                if "sc0" in mods: self.w = R[0] if op.startswith("buffer") else R[0]
            else:
                self.r = allr(R)
                if "x3" in op or "x4" in op:
                    self.stdata = R[0] if op.startswith("buffer") else R[1]
        elif op.startswith("ds_"):
            self.cls = "ds"
            if op.startswith(("ds_read", "ds_bpermute", "ds_permute", "ds_swizzle")):
                self.w = R[0]; self.r = allr(R[1:])
            else:
                self.r = allr(R)
        elif op.startswith("s_"):
            self.cls = "salu"
            if op == "s_nop":
                self.states = int(ops[0], 0) + 1
            elif op in ("s_branch",) or op.startswith("s_cbranch"):
                self.target = ops[0]
                if "vcc" in op: self.r = regs("vcc")
                if "exec" in op: self.r = regs("exec")
            elif op.startswith(("s_cmp", "s_bitcmp", "s_waitcnt", "s_barrier", "s_endpgm", "s_sleep", "s_setprio")):
                self.r = allr(R)
            elif op.startswith("s_") and "saveexec" in op:
                self.w = R[0] | regs("exec"); self.r = allr(R[1:]) | regs("exec")
            else:
                self.w = R[0] if R else set(); self.r = allr(R[1:])

def vset(s): return {x for x in s if x[0] in "va" and x[1:].isdigit()}
def sset(s): return {x for x in s if not (x[0] in "va" and x[1:].isdigit())}

def need(p, c):
    n = 0
    if p.cls == "valu":
        pw_v = vset(p.w); pw_s = sset(p.w)
        if c.cls == "mfma" and pw_v & c.r: n = max(n, 2)
        if c.cls == "valu":
            cb = c.op
            if c.dpp and pw_v & c.r: n = max(n, 2)
            if "permlane" in cb and pw_v & c.r: n = max(n, 2)
            if ("readlane" in cb or "readfirstlane" in cb) and pw_v & c.r: n = max(n, 1)
            if pw_s & c.r: n = max(n, 4 if ("readlane" in cb or "writelane" in cb) else 2)
            if p.op.replace("_e32", "").replace("_e64", "") in TRANS and pw_v & c.r: n = max(n, 1)
            if p.op.startswith("v_dot") and (pw_v & (c.r | c.w)):
                same_c = c.op == p.op and not (pw_v & (regs(c.ops[1]) | regs(c.ops[2])))
                if not same_c: n = max(n, 3)
            if ("exec_lo" in pw_s) and (c.dpp): n = max(n, 5)
            if ("exec_lo" in pw_s) and ("permlane" in cb or "readlane" in cb or "readfirstlane" in cb): n = max(n, 4)
        if c.cls == "mfma" and "exec_lo" in pw_s: n = max(n, 4)
        if c.cls in ("vmem", "vmem_lds") and pw_s & c.r: n = max(n, 5)
        if c.cls == "salu" and pw_s & c.r: n = max(n, 1)
    if p.cls == "mfma":
        k = {4: (0, 6, 8, 8, 3), 8: (0, 10, 12, 12, 7)}[p.passes]
        if c.cls == "mfma":
            if p.w & c.ab: n = max(n, k[2])
            if p.w & c.srcc:
                same = (p.w == c.srcc) and p.passes == c.passes
                n = max(n, k[0] if same else k[1])
            elif p.w & c.w: n = max(n, k[1])
        elif c.cls in ("valu", "vmem", "vmem_lds", "ds"):
            if p.w & (c.r | c.w): n = max(n, k[3])
            if c.cls == "valu" and p.srcc & c.w: n = max(n, k[4])
    if p.cls == "vmem" and p.stdata:
        if c.cls == "valu" and p.stdata & c.w: n = max(n, 2)
        elif p.stdata & c.w: n = max(n, 1)
    if p.cls == "salu" and "m0" in p.w and c.cls == "vmem_lds": n = max(n, 1)
    return n

class Asm:
    def __init__(self):
        self.lines = []
    def __call__(self, text):
        for l in text.split("\n"):
            l = l.strip()
            if l: self.lines.append(l)
    def finish(self, maxback=12):
        ins = [Ins(l) for l in self.lines]
        labels = {x.label: i for i, x in enumerate(ins) if x.label}
        preds_from = {}
        for i, x in enumerate(ins):
            if x.target is not None and x.target in labels:
                preds_from.setdefault(labels[x.target], []).append(i)
        pad = [0] * len(ins)
        def preds(i):
            out = []
            if i > 0:
                p = ins[i - 1]
                if not (p.op in ("s_branch", "s_endpgm")): out.append(i - 1)
            out += preds_from.get(i, [])
            return out
        changed = True; rounds = 0
        while changed:
            changed = False; rounds += 1
            for i, c in enumerate(ins):
                if c.cls in ("label", "dir"): continue
                worst = 0
                stack = [(j, pad[i]) for j in preds(i)]
                seen = {}
                while stack:
                    j, d = stack.pop()
                    if d >= maxback: continue
                    if seen.get(j, 99) <= d: continue
                    seen[j] = d
                    p = ins[j]
                    if p.cls not in ("label", "dir"):
                        nn = need(p, c) - d
                        if nn > worst: worst = nn
                    d2 = d + p.states + pad[j]
                    for q in preds(j): stack.append((q, d2))
                if worst > 0:
                    pad[i] += worst; changed = True
            assert rounds < 10
        out = []; self.nnops = 0
        for i, c in enumerate(ins):
            k = pad[i]
            while k > 0:
                t = min(k, 16); out.append(f"    s_nop {t-1}"); k -= t; self.nnops += 1
            out.append(c.text if c.cls in ("label", "dir") else "    " + c.text)
        return "\n".join(out) + "\n"
```

```python
from asmlib import Asm
from layout import *
KA = dict(x=0, wqkv=8, wo=16, bx=24, mem0=32, Wq=40, Wk=48, Wv=56, Wo=64, seg=72, gw=80, out=88, dbg=96, ws=104)
SZ = dict(x=2048*448*2, wqkv=448*1344*2, wo=448*448*2, mem0=8*448*2, Wq=448*4096*2, Wk=448*4096*2, Wv=448*4096*2,
          Wo=448*4096*2, gw=448*2, out=2048*448*2, dbg=256, ws=WS_BYTES)
def vr(b, n=1): return f"v{b}" if n == 1 else f"v[{b}:{b+n-1}]"
def ar(b, n=1): return f"a{b}" if n == 1 else f"a[{b}:{b+n-1}]"
def sr(b, n=1): return f"s{b}" if n == 1 else f"s[{b}:{b+n-1}]"
def srd_load(a, name, d):
    a(f"s_load_dwordx2 s[{d}:{d+1}], s[0:1], {KA[name]}")
def srd_fin(a, name, d):
    a(f"s_mov_b32 s{d+2}, {hex(SZ[name])}\ns_mov_b32 s{d+3}, 0x20000")
def header(a, name):
    a(f".globl {name}\n.p2align 8\n.type {name},@function\n{name}:")
def kd(name, vgpr, accum, sgpr=102):
    return f""".section .rodata,"a"
.p2align 6
.amdhsa_kernel {name}
  .amdhsa_next_free_vgpr {vgpr}
  .amdhsa_next_free_sgpr {sgpr}
  .amdhsa_accum_offset {accum}
  .amdhsa_group_segment_fixed_size 0
  .amdhsa_kernarg_size 112
  .amdhsa_user_sgpr_count 2
  .amdhsa_user_sgpr_kernarg_segment_ptr 1
  .amdhsa_system_sgpr_workgroup_id_x 1
.end_amdhsa_kernel
.text
"""

DG = "s[84:87]"
RI, RS, RM, RT_, RL_ = 0x10, 0x14, 0x18, 0x1c, 0x20
CI, CM1, RM1, CW1 = 0x90, 0x94, 0x28, 0xa0
CM, CT, CMASK, CL, CW, RC = 0x80, 0x84, 0x88, 0x8c, 0xc0, 0x24
def arrive(a, tag, coff, total, roff, v):
    a(f"""s_cmp_lg_u32 s26, 0
s_cbranch_scc1 {tag}
s_mov_b64 exec, 1
v_mov_b32 v{v}, 1
buffer_atomic_add v{v}, off, {DG}, 0 offset:{coff} sc0 sc1
s_waitcnt vmcnt(0)
v_readfirstlane_b32 s33, v{v}
s_cmp_lg_u32 s33, {total-1}
s_cbranch_scc1 {tag}_x
buffer_store_dword v{v}, off, {DG}, 0 offset:{roff} sc1
{tag}_x:
s_mov_b64 exec, -1
{tag}:""")
def wait_rel(a, tag, roff, v=5, sleep=6, wg=True):
    if wg: a(f"s_cmp_lg_u32 s26, 0\ns_cbranch_scc1 {tag}_b")
    a(f"""{tag}:
buffer_load_dword v{v}, off, {DG}, 0 offset:{roff} sc1
s_waitcnt vmcnt(0)
v_readfirstlane_b32 s33, v{v}
s_cmp_lg_u32 s33, 0
s_cbranch_scc1 {tag}_b
s_sleep {sleep}
s_branch {tag}
{tag}_b:""")
    if wg: a("s_barrier")
def wait_img(a, tag, smat, sleep=4, v=5, word=1, cert=True):
    a(f"s_cmp_lg_u32 s26, 0\ns_cbranch_scc1 {tag}_b")
    if cert: wait_rel(a, tag + "c", RC, v, wg=False)
    a(f"""s_lshl_b32 s36, {smat}, 7
s_add_u32 s36, s36, {hex(OFF_RW)}
{tag}:
buffer_load_dword v{v}, off, s[4:7], s36 offset:{4*word} sc1
s_waitcnt vmcnt(0)
v_readfirstlane_b32 s33, v{v}
s_cmp_lg_u32 s33, 0
s_cbranch_scc1 {tag}_b
s_sleep {sleep}
s_branch {tag}
{tag}_b:
s_barrier""")
```

```python
from gen_common import *

class VM:
    def __init__(self, a): self.a = a; self.n = 0; self.tags = {}
    def op(self, text, tag=None):
        self.a(text); self.n += 1
        if tag is not None: self.tags[tag] = self.n
    def wait(self, tag):
        k = min(self.n - self.tags[tag], 63)
        self.a(f"s_waitcnt vmcnt({k})")

LOG2E = 1.4426950408889634
import struct
def f32(x): return hex(struct.unpack("<I", struct.pack("<f", x))[0])

import os
OPT = dict(x.split('=') for x in os.environ.get('OPT','').split(',') if x)
WS, X, SA, SB, M0 = 4, 8, 12, 16, 20
def consts(a):
    a("""v_and_b32 v2, 63, v0
v_lshlrev_b32 v3, 4, v0
v_lshlrev_b32 v4, 4, v2
v_lshrrev_b32 v5, 4, v2
v_and_b32 v6, 15, v2""")

def gemm_body(a, prof=False):
    first = len(a.lines)
    consts(a)
    ABUF = 32768; BOFF = 131072
    ACC = lambda i, tt, t: 128 + ((i*2+tt)*4+t)*4
    BF = lambda t, es: (t*8+es)*4
    RG = 64
    a("""s_and_b32 s36, s34, 15
s_lshl_b32 s37, s36, 9
v_lshrrev_b32 v8, 3, v2
v_and_b32 v9, 7, v2""")
    for jh in range(2):
        a(f"""v_or_b32 v10, {4*jh}, v5
v_xor_b32 v10, v10, v9
v_lshlrev_b32 v10, 4, v10
v_bfe_u32 v11, v8, 1, 1
v_lshlrev_b32 v11, 3, v11
v_bfe_u32 v12, v8, 2, 1
v_lshl_add_u32 v11, v12, 2, v11
v_and_b32 v13, 1, v8
v_add_u32 v11, v11, v13
v_add_u32 v11, {16*jh}, v11
v_lshl_add_u32 v{16+jh}, v11, 13, v10
v_lshlrev_b32 v11, 3, v12
v_and_b32 v13, 3, v8
v_add_u32 v11, v11, v13
v_add_u32 v11, {16*jh}, v11
v_lshl_add_u32 v{18+jh}, v11, 13, v10""")
    a(f"""v_lshrrev_b32 v10, 1, v6
v_xor_b32 v10, v10, v5
v_lshlrev_b32 v11, 7, v6
v_lshl_add_u32 v22, v10, 4, v11
v_xor_b32 v23, 64, v22
s_lshl_b32 s48, s26, 13
v_add_u32 v20, s48, v22
v_add_u32 v21, s48, v23
v_add_u32 v22, {BOFF}, v22
v_add_u32 v23, {BOFF}, v23
v_add_u32 v24, 0x10000, v20
v_add_u32 v25, 0x10000, v21
s_lshl_b32 s49, s26, 11
s_add_u32 s49, s49, {BOFF}""")
    for i in range(4):
        a(f"""s_add_u32 s38, s26, {4*i}
s_min_u32 s38, s38, 13
s_lshl_b32 s{40+2*i}, s38, 18
s_add_u32 s{40+2*i}, s{40+2*i}, s37
s_add_u32 s{41+2*i}, s{40+2*i}, 16384""")
    a(f"""s_mul_i32 s39, s34, 28
s_lshl_b32 s38, s35, 2
s_add_u32 s39, s39, s38
s_mul_i32 s39, s39, {14*1024}""")
    assert OFF_WA == 0 and OFF_WB == 16*WSZ
    a(f"s_lshr_b32 s38, s34, {OPT.get('rsh', 3)}\ns_add_u32 s38, s38, s34" if OPT.get("rot", "1") == "2" else f"s_mul_i32 s38, s34, {OPT.get('rot', 1)}")
    for c in range(4):
        a(f"""s_add_u32 s{60+c}, s38, {c}
s_and_b32 s{60+c}, s{60+c}, 3
s_mul_i32 s{64+c}, s{60+c}, {64*896}
s_lshl_b32 s{60+c}, s{60+c}, 7""")
    SIG = int(OPT.get("sig", 6))
    a("""s_and_b32 s57, s34, 3
s_lshl_b32 s57, s57, 3
s_lshl_b32 s56, 1, s57
v_mov_b32 v28, 0x40000000
v_cmp_eq_u32 vcc, 0, v0
v_cndmask_b32 v29, v28, 0, vcc
v_mov_b32 v28, s56
s_and_b32 s56, s34, 28""")
    def body(isA):
        vm = VM(a)
        def ldB(c, k):
            a(f"s_add_u32 s51, s54, s{60+c}" if isA else f"s_add_u32 s51, s54, s{64+c}\ns_add_u32 s51, s51, {8*k*896}")
            a(f"s_add_u32 m0, s49, {c*8192 + k*1024}")
            vm.op(f"buffer_load_dwordx4 v{18+k if isA else 18}, s[{SB}:{SB+3}], s51 offen lds")
        def ldA(st, k):
            p, c = st >> 2, st & 3
            i, tt, jh = 2*p + (k >> 2), (k >> 1) & 1, k & 1
            a(f"s_add_u32 s51, s{40+2*i+tt}, s{60+c}\ns_add_u32 m0, s48, {c*ABUF + k*1024}")
            vm.op(f"buffer_load_dwordx4 v{16+jh}, s[{SA}:{SA+3}], s51 offen lds", (st, k))
        if OPT.get("rowmaj"):
            for k in range(2):
                for c in range(4): ldB(c, k)
            for k in range(8):
                for c in range(4): ldA(c, k)
        else:
            for c in range(4):
                ldB(c, 0); ldB(c, 1)
                for k in range(8): ldA(c, k)
        def epilogue(p):
            L = []
            for ii in range(2):
                i = 2*p + ii
                if i == 3: L.append("s_cmp_ge_u32 s26, 2\ns_cbranch_scc1 M_join")
                L.append(f"s_add_u32 s50, s26, {4*i}\ns_lshl_b32 s50, s50, 10\ns_add_u32 s50, s50, s39")
                for t in range(4):
                    o = 32 + 4*((ii*4+t) & 7); x = ""
                    for tt in range(2):
                        d = ACC(ii, tt, t) + 64*p
                        if isA: x += f"v_pk_mul_f32 v[{d}:{d+1}], v[{d}:{d+1}], s[52:53]\nv_pk_mul_f32 v[{d+2}:{d+3}], v[{d+2}:{d+3}], s[52:53]\n"
                        x += f"v_cvt_pk_bf16_f32 v{o+2*tt}, v{d}, v{d+1}\nv_cvt_pk_bf16_f32 v{o+2*tt+1}, v{d+2}, v{d+3}\n"
                    L.append(x)
                    L.append(("st", f"buffer_store_dwordx4 v[{o}:{o+3}], v4, s[{WS}:{WS+3}], s50 offen"))
                    if t < 3: L.append(f"s_add_u32 s50, s50, {14*1024}")
            return L
        def emit(x):
            if isinstance(x, tuple): vm.op(x[1])
            else: a(x)
        pend = []
        for st in range(8):
            p, c = st >> 2, st & 3
            vm.wait((st, 7))
            if st == SIG:
                assert not pend
                a("s_waitcnt vmcnt(0)\ns_barrier")
                vm.op(f"buffer_atomic_add v28, v29, {DG}, s56 offen offset:{CW1} sc0 sc1", "c1")
            if p == 0:
                a("s_barrier")
                for t in range(4):
                    for e in range(2):
                        b = BF(t, 2*c+e)
                        if isA: a(f"ds_read_b128 a[{b}:{b+3}], v{22+e} offset:{c*8192 + t*2048}")
                        else:
                            for hh in range(2):
                                a(f"ds_read_b64_tr_b16 a[{b+2*hh}:{b+2*hh+1}], v{26 + (t >> 1)} offset:{c*8192 + (32*e+4*hh)*128 + 8*(t&1)}")
            if prof and st in (0, 3, 4, 7): a(f"s_memrealtime s[{80+2*(0,3,4,7).index(st)}:{81+2*(0,3,4,7).index(st)}]")
            for n in range(8):
                e, it = n >> 2, n & 3; b = RG + n*4
                a(f"ds_read_b128 v[{b}:{b+3}], v{(20 if c < 2 else 24)+e} offset:{(c & 1)*ABUF + it*2048}")
            for n in range(8):
                e, ii, tt = n >> 2, (n >> 1) & 1, n & 1; b = RG + n*4
                a(f"s_waitcnt lgkmcnt({7-n})")
                for t in range(4):
                    d = ACC(ii, tt, t) + 64*p
                    cc = "0" if (c == 0 and e == 0) else f"v[{d}:{d+3}]"
                    a(f"v_mfma_f32_16x16x32_bf16 v[{d}:{d+3}], v[{b}:{b+3}], a[{BF(t, 2*c+e)}:{BF(t, 2*c+e)+3}], {cc}")
                    if p == 0 and n == 7: ldA(st+4, 2*t); ldA(st+4, 2*t+1)
                    if pend and n >= 1: emit(pend.pop(0))
            if st == 3: pend = epilogue(0)
        assert not pend
        vm.wait("c1")
        tg = "K1_sa" if isA else "K1_sb"
        a(f"""v_readfirstlane_b32 s33, v28
s_lshr_b32 s33, s33, s57
s_and_b32 s33, s33, 255
s_cmp_lg_u32 s33, 6
s_cbranch_scc1 {tg}
s_cmp_lg_u32 s26, 0
s_cbranch_scc1 {tg}""")
        wait_rel(a, tg + "c", RC, 30, wg=False)
        a(f"""s_lshl_b32 s33, s34, 7
s_add_u32 s33, s33, {hex(OFF_RW)}
buffer_store_dword v30, v29, s[4:7], s33 offen sc1
{tg}:""")
        if prof: a("s_memrealtime s[88:89]")
        for x in epilogue(1): emit(x)
        a("s_branch M_join")
    a("s_cmp_ge_u32 s34, 16\ns_cbranch_scc1 K1_bmat")
    a("s_mov_b64 s[12:13], s[68:69]\ns_mov_b64 s[16:17], s[70:71]"); srd_fin(a, "Wq", SA); srd_fin(a, "Wk", SB)
    a(f"""s_lshl_b32 s54, s35, 19
s_add_u32 s54, s54, s37
s_lshr_b32 s55, s26, 1
s_lshl_b32 s55, s55, 18
s_add_u32 s54, s54, s55
s_and_b32 s55, s26, 1
s_lshl_b32 s55, s55, 15
s_add_u32 s54, s54, s55
s_mov_b32 s52, {f32(LOG2E/16)}
s_mov_b32 s53, {f32(LOG2E/16)}
s_waitcnt lgkmcnt(0)""")
    body(True)
    a("K1_bmat:")
    a("s_mov_b64 s[12:13], s[72:73]\ns_mov_b64 s[16:17], s[74:75]"); srd_fin(a, "Wv", SA); srd_fin(a, "Wo", SB)
    a(f"""v_and_b32 v10, 1, v5
v_lshlrev_b32 v10, 2, v10
v_xor_b32 v10, v10, v9
v_mul_u32_u24 v18, 896, v8
v_lshl_add_u32 v18, v10, 4, v18
s_lshl_b32 s54, s36, 8
s_lshl_b32 s55, s26, 4
s_add_u32 s54, s54, s55
s_mul_i32 s54, s54, 896
s_lshl_b32 s55, s35, 7
s_add_u32 s54, s54, s55
v_lshrrev_b32 v8, 2, v6
v_lshlrev_b32 v10, 1, v8
v_and_b32 v10, 4, v10
v_lshl_add_u32 v8, v5, 3, v8
v_lshlrev_b32 v8, 7, v8
v_and_b32 v9, 3, v6
v_or_b32 v9, v9, v10
v_lshl_add_u32 v26, v9, 4, v8
v_add_u32 v26, {BOFF}, v26
v_xor_b32 v27, 64, v26
s_waitcnt lgkmcnt(0)""")
    body(False)
    for k in range(first, len(a.lines)):
        l = a.lines[k]
        if l.startswith("buffer_load") and OPT.get("k1ld", "nt") != "0":
            l = l[:-4] + " " + OPT.get("k1ld", "nt") + " lds" if l.endswith(" lds") else l + " " + OPT.get("k1ld", "nt")
        if l.startswith("buffer_store") and " sc1" not in l and OPT.get("k1st", "sc1"): l += " " + OPT.get("k1st", "sc1").replace("+", " ")
        a.lines[k] = l

def misc_body(a):
    first = len(a.lines)
    consts(a)
    srd_load(a, "mem0", M0); srd_fin(a, "mem0", M0)
    a(f"""v_lshrrev_b32 v8, 2, v6
v_lshlrev_b32 v8, 3, v8
v_and_b32 v9, 3, v6
v_add_u32 v8, v8, v9
v_mul_u32_u24 v8, 896, v8
v_lshl_add_u32 v19, v5, 4, v8
s_lshl_b32 s28, s27, 5
s_lshr_b32 s29, s26, 1
s_lshl_b32 s29, s29, 2
s_add_u32 s28, s28, s29
s_mul_i32 s28, s28, 896
s_and_b32 s29, s26, 1
s_mul_i32 s29, s29, 448
s_add_u32 s28, s28, s29
s_lshl_b32 s29, s27, 2
s_add_u32 s29, s29, s26
s_mul_i32 s29, s29, {7*1024}
s_add_u32 s30, s29, {hex(OFF_XN)}
s_add_u32 s29, s29, {hex(OFF_XP)}
s_add_u32 s31, s30, 4096
s_add_u32 s32, s29, 4096""")
    for j in range(7): a(f"buffer_load_dwordx4 v[{200+4*j}:{203+4*j}], v19, s[{X}:{X+3}], s28 offen offset:{64*j}")
    a(f"""v_mov_b32 v8, -1
v_mov_b32 v9, -1
v_mov_b32 v10, -1
v_mov_b32 v11, -1
s_lshl_b32 s33, s27, 14
s_add_u32 s33, s33, {hex(OFF_MF)}
s_and_b32 s36, s27, 31
s_cmp_eq_u32 s36, 0
s_cselect_b32 s34, 0x40000000, s33
s_add_u32 s35, s34, 4096
buffer_store_dwordx4 v[8:11], v3, s[{WS}:{WS+3}], s34 offen
buffer_store_dwordx4 v[8:11], v3, s[{WS}:{WS+3}], s35 offen
s_add_u32 s34, s33, 8192
s_add_u32 s35, s33, 12288
buffer_store_dwordx4 v[8:11], v3, s[{WS}:{WS+3}], s34 offen
buffer_store_dwordx4 v[8:11], v3, s[{WS}:{WS+3}], s35 offen
s_cmp_ge_u32 s27, 32
s_cbranch_scc1 K1_zero
s_mul_i32 s34, s27, 20480
s_add_u32 s34, s34, {hex(OFF_PM)}""")
    for k in range(5):
        a(f"buffer_store_dwordx4 v[8:11], v3, s[{WS}:{WS+3}], s34 offen")
        if k < 4: a("s_add_u32 s34, s34, 4096")
    a(f"""s_branch K1_z2
K1_zero:
v_mov_b32 v12, 0
v_mov_b32 v13, 0
v_mov_b32 v14, 0
v_mov_b32 v15, 0
s_mul_i32 s34, s36, 3072
s_add_u32 s34, s34, {hex(OFF_FL)}
v_mov_b32 v16, 0x40000000
v_cmp_gt_u32 vcc, 192, v0
v_cndmask_b32 v16, v16, v3, vcc
buffer_store_dwordx4 v[12:15], v16, s[{WS}:{WS+3}], s34 offen
K1_z2:
s_cmp_lg_u32 s36, 0
s_cbranch_scc1 K1_filled
v_and_b32 v8, 7, v0
v_mul_u32_u24 v8, 896, v8
v_lshrrev_b32 v9, 3, v0
v_lshl_add_u32 v8, v9, 4, v8
s_waitcnt lgkmcnt(0)
buffer_load_dwordx4 v[12:15], v8, s[{M0}:{M0+3}], 0 offen
buffer_load_dwordx4 v[16:19], v8, s[{M0}:{M0+3}], 0 offen offset:512
s_add_u32 s34, s33, 4096
s_waitcnt vmcnt(0)
v_min_u32 v12, -2, v12
v_min_u32 v13, -2, v13
v_min_u32 v14, -2, v14
v_min_u32 v15, -2, v15
v_min_u32 v16, -2, v16
v_min_u32 v17, -2, v17
v_min_u32 v18, -2, v18
v_min_u32 v19, -2, v19
buffer_store_dwordx4 v[12:15], v3, s[{WS}:{WS+3}], s33 offen
buffer_store_dwordx4 v[16:19], v3, s[{WS}:{WS+3}], s34 offen
K1_filled:
s_waitcnt vmcnt(2) lgkmcnt(0)""")
    for j in range(7):
        b = 200 + 4*j
        a(f"buffer_store_dwordx4 v[{b}:{b+3}], v4, s[{WS}:{WS+3}], {'s30' if j < 4 else 's31'} offen offset:{(j%4)*1024}")
    for j in range(7):
        b = 200 + 4*j
        a(f"v_permlane16_swap_b32 v{b}, v{b+2}\nv_permlane16_swap_b32 v{b+1}, v{b+3}\nv_swap_b32 v{b+1}, v{b+2}")
        a(f"buffer_store_dwordx4 v[{b}:{b+3}], v4, s[{WS}:{WS+3}], {'s29' if j < 4 else 's32'} offen offset:{(j%4)*1024}")
    for k in range(first, len(a.lines)):
        if a.lines[k].startswith("buffer_store"): a.lines[k] += " sc1"

def img_body(a):
    first = len(a.lines)
    consts(a)
    a("""v_lshrrev_b32 v8, 2, v6
v_lshl_add_u32 v40, v5, 3, v8
v_and_b32 v41, 3, v6
s_cmp_ge_u32 s34, 28
s_cbranch_scc1 K1_wo""")
    srd_load(a, "wqkv", SB); srd_fin(a, "wqkv", SB)
    RL = 1360
    a(f"""s_lshr_b32 s35, s34, 1
s_and_b32 s36, s34, 1
s_lshl_b32 s37, s35, 5
s_lshl_b32 s38, s26, 3
s_add_u32 s37, s37, s38
s_mul_i32 s37, s37, 2688
s_mul_i32 s39, s36, 1344
s_add_u32 s37, s37, s39
s_mul_i32 s38, s38, {RL}
v_add_u32 v42, s38, v4
s_waitcnt lgkmcnt(0)""")
    vm = VM(a)
    for rr in range(8):
        vm.op(f"buffer_load_dwordx4 v[{64+8*rr}:{67+8*rr}], v4, s[{SB}:{SB+3}], s37 offen")
        vm.op(f"buffer_load_dwordx4 v[{68+8*rr}:{71+8*rr}], v4, s[{SB}:{SB+3}], s37 offen offset:1024", ("R", rr))
        if rr < 7: a("s_add_u32 s37, s37, 2688")
    a("v_cmp_gt_u32 vcc, 20, v2\ns_mov_b64 s[60:61], vcc")
    for rr in range(8):
        vm.wait(("R", rr))
        a(f"ds_write_b128 v42, v[{64+8*rr}:{67+8*rr}] offset:{rr*RL}")
        a("s_mov_b64 exec, s[60:61]")
        a(f"ds_write_b128 v42, v[{68+8*rr}:{71+8*rr}] offset:{rr*RL+1024}")
        a("s_mov_b64 exec, -1")
    a(f"""v_mul_u32_u24 v43, {RL}, v40
v_lshl_add_u32 v43, v41, 4, v43
s_mul_i32 s38, s26, {6*56}
v_add_u32 v43, s38, v43
v_cmp_gt_u32 vcc, 12, v6
v_cndmask_b32 v44, 0, -1, vcc
s_mul_i32 s40, s36, 24
s_mul_i32 s41, s26, 6
s_add_u32 s40, s40, s41
s_waitcnt lgkmcnt(0)
s_barrier""")
    for j in range(6):
        for tile in range(2):
            o = 64 + (j*2+tile)*4
            for hh in range(2):
                a(f"ds_read_b64_tr_b16 v[{o+2*hh}:{o+2*hh+1}], v43 offset:{4*hh*RL + j*56 + 8*tile}")
    a("s_waitcnt lgkmcnt(0)")
    for j in range(6):
        a(f"""s_add_u32 s41, s40, {j}
s_and_b32 s42, s41, 15
s_lshr_b32 s41, s41, 4
s_mul_i32 s42, s42, 3
s_add_u32 s41, s41, s42
s_mul_i32 s41, s41, 28
s_add_u32 s41, s41, s35
s_lshl_b32 s41, s41, 10
s_add_u32 s41, s41, {hex(OFF_WL)}
s_add_u32 s42, s41, {14*1024}""")
        o = 64 + j*8
        for k in range(4): a(f"v_and_b32 v{o+4+k}, v{o+4+k}, v44")
        a(f"buffer_store_dwordx4 v[{o}:{o+3}], v4, s[{WS}:{WS+3}], s41 offen")
        a(f"buffer_store_dwordx4 v[{o+4}:{o+7}], v4, s[{WS}:{WS+3}], s42 offen")
    a("s_branch K1_mdone")
    a("K1_wo:")
    srd_load(a, "wo", SB); srd_fin(a, "wo", SB)
    RO = 912
    a(f"""s_sub_u32 s35, s34, 28
s_lshl_b32 s35, s35, 2
s_add_u32 s35, s35, s26
s_mul_i32 s37, s35, {28*896}
s_mul_i32 s38, s26, {32*RO}
v_add_u32 v42, s38, v4
s_waitcnt lgkmcnt(0)""")
    vm = VM(a)
    for rr in range(28):
        imm = (rr % 4) * 896
        vm.op(f"buffer_load_dwordx4 v[{64+4*rr}:{67+4*rr}], v4, s[{SB}:{SB+3}], s37 offen offset:{imm}", ("R", rr))
        if rr % 4 == 3: a(f"s_add_u32 s37, s37, {4*896}")
    a("v_cmp_gt_u32 vcc, 56, v2\ns_and_saveexec_b64 s[60:61], vcc")
    for rr in range(28):
        vm.wait(("R", rr))
        a(f"ds_write_b128 v42, v[{64+4*rr}:{67+4*rr}] offset:{rr*RO}")
    a(f"""s_mov_b64 exec, s[60:61]
v_mul_u32_u24 v43, {RO}, v40
v_lshl_add_u32 v43, v41, 4, v43
v_add_u32 v43, s38, v43
v_cmp_gt_u32 vcc, 3, v5
v_cndmask_b32 v44, 0, -1, vcc
s_lshl_b32 s41, s35, 10
s_add_u32 s41, s41, {hex(OFF_WO)}
s_waitcnt lgkmcnt(0)""")
    for ct in range(28):
        o = 64 + 4*ct
        for hh in range(2):
            a(f"ds_read_b64_tr_b16 v[{o+2*hh}:{o+2*hh+1}], v43 offset:{4*hh*RO + (32*(ct>>1)+4*(ct&1))*2}")
        if ct % 7 == 6: a("s_waitcnt lgkmcnt(0)")
    for ct in range(28):
        o = 64 + 4*ct
        a(f"v_and_b32 v{o+2}, v{o+2}, v44\nv_and_b32 v{o+3}, v{o+3}, v44")
        a(f"buffer_store_dwordx4 v[{o}:{o+3}], v4, s[{WS}:{WS+3}], s41 offen")
        a(f"s_add_u32 s41, s41, {16*1024}")
    a("K1_mdone:")
    for k in range(first, len(a.lines)):
        if a.lines[k].startswith("buffer_store"): a.lines[k] += " sc1"
```

```python
H=16; D=448; NS=64; CT=28; KS=14
WSZ = 28*14*1024
OFF_WA = 0x0000000
OFF_WB = 0x0620000
OFF_WL = 0x0C40000
OFF_WO = 0x0D90000
OFF_XP = 0x0E00000
OFF_MF = 0x0FC0000
OFF_MX = 0x1040000
OFF_PM = 0x10C0000
OFF_FL = 0x1160000
OFF_ZF = OFF_FL + 0x4000
OFF_PROG = OFF_FL + 0x5000
OFF_UF = OFF_FL + 0x6000
OFF_KV = 0x1168000
ZERO_END = 0x1178000
OFF_GA = 0x1180000
OFF_OMG = 0x1340000
OFF_PT = 0x1360000
OFF_U  = 0x15E0000
OFF_Z  = 0x1CE0000
OFF_XN = OFF_Z + 64*16*28*1024
OFF_RW = OFF_XN + 64*28*1024
WS_END = OFF_RW + 4096
WS_BYTES = 0x10000000
SENT = 0xFFFFFFFF
FL_Z, FL_P, FL_U, FL_G = 0, 16, 32, 48

def col(ct, n): return 32*(ct>>1) + 8*(n>>2) + 4*(ct&1) + (n&3)
def tau(a, n): return 8*(n>>2) + 4*a + (n&3)
def fperm(k):
    g, k16 = divmod(k, 16); j = k16>>2; half = (k16>>1)&1; e = k16&1
    return 16*g + 8*half + 2*j + e
```

```python
from gen_common import *
from k1 import f32, LOG2E, OPT
WS, X, AUX = 4, 8, 12
WSR = f"s[{WS}:{WS+3}]"; XR = f"s[{X}:{X+3}]"; AUXR = f"s[{AUX}:{AUX+3}]"
NZ = 3; NT = 3

def wreg(u, n=4):
    b = 4*u
    return f"a[{b}:{b+n-1}]" if u < 64 else f"v[{120+b-256}:{120+b-256+n-1}]"

def lane_consts(a):
    a("""v_lshrrev_b32 v1, 6, v0
v_readfirstlane_b32 s26, v1
v_and_b32 v1, 63, v0
v_lshlrev_b32 v2, 4, v1
v_lshrrev_b32 v3, 4, v1
v_and_b32 v4, 15, v1""")

def init_wait(a, tag):
    wait_rel(a, tag, RM, 5)

def tile_map(a):
    a("""s_and_b32 s32, s26, 1
s_mul_i32 s31, s26, 7
s_add_u32 s30, s31, s32
s_xor_b32 s33, s32, 1
s_mul_i32 s33, s33, 6
s_add_u32 s31, s31, s33""")

def load_weights_natural(a, off_img):
    a(f"s_add_u32 s35, s27, {0 if off_img == OFF_WA else 16}")
    wait_img(a, "RT_wi" if off_img == OFF_WA else "RZ_wi", "s35")
    a(f"""s_mul_i32 s34, s27, 28
s_add_u32 s35, s34, s31
s_add_u32 s34, s34, s30
s_mul_i32 s34, s34, {14*1024}
s_mul_i32 s35, s35, {14*1024}
s_add_u32 s34, s34, {hex(off_img)}
s_add_u32 s35, s35, {hex(off_img)}""")
    for u in range(98):
        s = "s34" if u < 84 else "s35"; j = u if u < 84 else u - 84
        a(f"buffer_load_dwordx4 {wreg(u)}, v2, {WSR}, {s} offen offset:{(j % 4)*1024}")
        if j % 4 == 3: a(f"s_add_u32 {s}, {s}, 4096")

XB = 28*1024
def x_dma(a, sseg, sbuf):
    for j in range(7):
        if j % 4 == 0:
            a(f"s_add_u32 s36, {sseg}, {j*1024}\ns_add_u32 m0, {sbuf}, {j*1024}")
        a(f"buffer_load_dwordx4 v2, {WSR}, s36 offen offset:{(j % 4)*1024} lds")

ACC = 32
RING = 16
def acc(lt, t): return ACC + (lt*2+t)*4
def gemm_segment(a, w_is_A, vaddr):
    def rd(ks):
        for t in range(2):
            b = RING + ((ks & 1)*2 + t)*4
            a(f"ds_read_b128 v[{b}:{b+3}], {vaddr} offset:{(t*14+ks)*1024}")
    rd(0)
    for ks in range(14):
        if ks < 13: rd(ks+1)
        a(f"s_waitcnt lgkmcnt({2 if ks < 13 else 0})")
        for lt in range(7):
            for t in range(2):
                d = acc(lt, t); b = RING + ((ks & 1)*2 + t)*4
                c = "0" if ks == 0 else f"v[{d}:{d+3}]"
                w = wreg(lt*14+ks); xx = f"v[{b}:{b+3}]"
                a(f"v_mfma_f32_16x16x32_bf16 v[{d}:{d+3}], {w if w_is_A else xx}, {xx if w_is_A else w}, {c}")

def role_Z(a):
    a("R_Z:")
    tile_map(a)
    a(f"""s_mov_b32 s40, s28
s_mul_i32 s43, s26, {7*1024}
s_mul_i32 s41, s40, {XB}
s_add_u32 s41, s41, s43
s_add_u32 s41, s41, {hex(OFF_XP)}
s_mov_b32 s42, s43
s_mov_b32 s44, 0""")
    load_weights_natural(a, OFF_WB)
    init_wait(a, "RZ_iw")
    x_dma(a, "s41", "s42")
    a(f"""v_mov_b32 v5, 1
s_lshr_b32 s45, s27, 2
s_lshl_b32 s45, s45, 10
s_and_b32 s46, s27, 3
s_lshl_b32 s46, s46, 2
s_add_u32 s45, s45, s46
s_add_u32 s45, s45, {hex(OFF_ZF)}
v_mov_b32 v6, 0
s_waitcnt vmcnt(0)""")
    a("RZ_loop:")
    a("s_waitcnt vmcnt(7)\ns_barrier")
    a(f"""s_sub_u32 s46, s40, {2*NZ}
s_cmp_lt_i32 s46, 0
s_cbranch_scc1 RZ_noflag
s_cmp_lg_u32 s26, 0
s_cbranch_scc1 RZ_noflag
s_lshl_b32 s46, s46, 4
s_add_u32 s46, s46, s45
s_mov_b64 exec, 1
buffer_store_dword v5, v6, {WSR}, s46 offen sc1
s_mov_b64 exec, -1
RZ_noflag:""")
    a(f"""v_add_u32 v7, s44, v2
s_xor_b32 s44, s44, {XB}
s_add_u32 s42, s44, s43
s_add_u32 s47, s40, {NZ}
s_min_u32 s47, s47, 63
s_mul_i32 s41, s47, {XB}
s_add_u32 s41, s41, s43
s_add_u32 s41, s41, {hex(OFF_XP)}""")
    x_dma(a, "s41", "s42")
    gemm_segment(a, False, "v7")
    a(f"""s_lshl_b32 s47, s40, 4
s_add_u32 s47, s47, s27
s_mul_i32 s47, s47, 28
s_add_u32 s48, s47, s31
s_add_u32 s47, s47, s30
s_lshl_b32 s47, s47, 10
s_lshl_b32 s48, s48, 10
s_add_u32 s47, s47, {hex(OFF_Z)}
s_add_u32 s48, s48, {hex(OFF_Z)}
s_add_u32 s49, s47, 4096""")
    for lt in range(7):
        d0 = acc(lt, 0); d1 = acc(lt, 1)
        a(f"""v_cvt_pk_bf16_f32 v{d0}, v{d0}, v{d0+1}
v_cvt_pk_bf16_f32 v{d0+1}, v{d0+2}, v{d0+3}
v_cvt_pk_bf16_f32 v{d0+2}, v{d1}, v{d1+1}
v_cvt_pk_bf16_f32 v{d0+3}, v{d1+2}, v{d1+3}""")
        s, o = ("s47", lt*1024) if lt < 4 else (("s49", (lt-4)*1024) if lt < 6 else ("s48", 0))
        a(f"buffer_store_dwordx4 v[{d0}:{d0+3}], v2, {WSR}, {s} offen offset:{o} sc1{' nt' if OPT.get('zsnt') else ''}")
    a(f"""s_cmp_ge_u32 s40, {NZ}
s_cbranch_scc1 RZ_nf
s_waitcnt vmcnt(0)
s_barrier
s_cmp_lg_u32 s26, 0
s_cbranch_scc1 RZ_nf
s_lshl_b32 s46, s40, 4
s_add_u32 s46, s46, s45
s_mov_b64 exec, 1
buffer_store_dword v5, v6, {WSR}, s46 offen sc1
s_mov_b64 exec, -1
RZ_nf:
s_add_u32 s40, s40, {NZ}
s_cmp_lt_u32 s40, 64
s_cbranch_scc1 RZ_loop
s_waitcnt vmcnt(0)
s_barrier
s_cmp_lg_u32 s26, 0
s_cbranch_scc1 RZ_u
s_mov_b64 exec, 1
s_sub_u32 s46, s40, {2*NZ}
s_lshl_b32 s46, s46, 4
s_add_u32 s46, s46, s45
buffer_store_dword v5, v6, {WSR}, s46 offen sc1
s_add_u32 s46, s46, {NZ*16}
buffer_store_dword v5, v6, {WSR}, s46 offen sc1
s_mov_b64 exec, -1
RZ_u:""")
    LD = 88
    a(f"""v_lshrrev_b32 v8, 2, v4
v_lshlrev_b32 v9, 13, v8
v_lshl_add_u32 v9, v3, 7, v9
v_and_b32 v10, 3, v4
v_lshl_add_u32 v9, v10, 4, v9
v_mul_u32_u24 v10, {4*28*1024}, v3
v_lshl_add_u32 v10, v4, 4, v10
s_and_b32 s33, s27, 3
s_lshl_b32 s33, s33, 8
v_add_u32 v10, s33, v10
v_add_u32 v11, s43, v2
s_lshr_b32 s50, s26, 1
s_lshl_b32 s50, s50, 6
s_mul_i32 s33, s32, {7*512}
s_add_u32 s50, s50, s33
s_add_u32 s50, s50, {hex(OFF_MX)}
s_lshr_b32 s51, s27, 2
s_mul_i32 s51, s51, 28
s_lshl_b32 s52, s27, 2
s_add_u32 s52, s52, {hex(OFF_UF)}
s_mov_b32 s53, {hex(OFF_PROG)}
s_mov_b32 s40, s28
RZ_ul:
s_lshl_b32 s46, s40, 2
s_add_u32 s46, s46, 4
s_cmp_lg_u32 s26, 0
s_cbranch_scc1 RZ_pb
RZ_pw:
buffer_load_dword v12, off, {WSR}, s53 sc1
s_waitcnt vmcnt(0)
v_cmp_le_u32 vcc, s46, v12
s_cbranch_vccnz RZ_pb
s_sleep 24
s_branch RZ_pw
RZ_pb:
s_barrier
s_lshl_b32 s46, s40, 15
s_add_u32 s46, s46, s50
RZ_ld:""")
    for j in range(7): a(f"buffer_load_dwordx4 v[{LD+4*j}:{LD+4*j+3}], v9, {WSR}, s46 offen offset:{j*512} sc1")
    a(f"s_waitcnt vmcnt(0)\nv_max3_u32 v12, v{LD}, v{LD+1}, v{LD+2}\nv_mov_b32 v13, v{LD+27}")
    for k in range(3, 27, 4): a(f"v_max3_u32 v12, v{LD+k}, v{LD+k+1}, v12\nv_max3_u32 v13, v{LD+k+2}, v{LD+k+3}, v13")
    a(f"""v_max_u32 v12, v12, v13
v_cmp_eq_u32 vcc, -1, v12
s_cbranch_vccz RZ_ok
s_sleep 6
s_branch RZ_ld
RZ_ok:""")
    for j in range(7):
        b = LD + 4*j
        a(f"v_permlane16_swap_b32 v{b}, v{b+2}\nv_permlane16_swap_b32 v{b+1}, v{b+3}\nv_swap_b32 v{b+1}, v{b+2}")
        a(f"ds_write_b128 v11, v[{b}:{b+3}] offset:{j*1024}")
    a("s_waitcnt lgkmcnt(0)\ns_barrier")
    gemm_segment(a, False, "v2")
    a(f"""s_mul_i32 s47, s40, {16*28}
s_add_u32 s47, s47, s51
s_add_u32 s48, s47, s31
s_add_u32 s47, s47, s30
s_lshl_b32 s47, s47, 10
s_lshl_b32 s48, s48, 10
s_add_u32 s47, s47, {hex(OFF_U)}
s_add_u32 s48, s48, {hex(OFF_U)}
s_add_u32 s49, s47, 4096""")
    for lt in range(7):
        d0 = acc(lt, 0); d1 = acc(lt, 1)
        a(f"""v_cvt_pk_bf16_f32 v{d0}, v{d0}, v{d0+1}
v_cvt_pk_bf16_f32 v{d0+1}, v{d0+2}, v{d0+3}
v_cvt_pk_bf16_f32 v{d0+2}, v{d1}, v{d1+1}
v_cvt_pk_bf16_f32 v{d0+3}, v{d1+2}, v{d1+3}""")
        s, o = ("s47", lt*1024) if lt < 4 else (("s49", (lt-4)*1024) if lt < 6 else ("s48", 0))
        a(f"buffer_store_dwordx4 v[{d0}:{d0+3}], v10, {WSR}, {s} offen offset:{o} sc1")
    a(f"""s_lshl_b32 s46, s40, 6
s_add_u32 s46, s46, s52
s_waitcnt vmcnt(0)
s_barrier
s_cmp_lg_u32 s26, 0
s_cbranch_scc1 RZ_nf2
s_mov_b64 exec, 1
buffer_store_dword v5, v6, {WSR}, s46 offen sc1
s_mov_b64 exec, -1
RZ_nf2:
s_add_u32 s40, s40, {NZ}
s_cmp_lt_u32 s40, 15
s_cbranch_scc1 RZ_ul
s_endpgm""")
```

```python
from main_roles import *
import team, asmlib, k1
MAIN_LDS = 160*1024
def gen_main(name, roles, force=None, prof=False, fused=False):
    a = Asm(); header(a, name)
    a("s_cmp_ge_u32 s2, 256\ns_cbranch_scc1 M_end")
    srd_load(a, "ws", WS); srd_load(a, "x", X); srd_load(a, "dbg", 84)
    a("s_load_dwordx8 s[68:75], s[0:1], 40")
    if prof: a("s_memrealtime s[98:99]\ns_memtime s[100:101]")
    if k1.OPT.get("hp"): a("s_memrealtime s[98:99]")
    if k1.OPT.get("rotx"): a(f"s_add_u32 s24, s2, {k1.OPT['rotx']}\ns_and_b32 s24, s24, 7\ns_and_b32 s2, s2, 0xf8\ns_or_b32 s2, s2, s24")
    a("s_and_b32 s24, s2, 7\ns_lshr_b32 s25, s2, 3")
    lane_consts(a)
    srd_fin(a, "ws", WS); srd_fin(a, "x", X)
    srd_fin(a, "dbg", 84)
    a("s_waitcnt lgkmcnt(0)")
    if int(k1.OPT.get("odd", 1)):
        a(f"""s_cmp_gt_u32 s24, 1
s_cbranch_scc1 M_sw_done
s_cmp_lg_u32 s2, 0
s_cbranch_scc1 M_sw_w
s_getreg_b32 s33, hwreg(HW_REG_XCC_ID)
s_and_b32 s33, s33, 1
s_add_u32 s33, s33, 1
s_cmp_lg_u32 s26, 0
s_cbranch_scc1 M_sw_b
v_mov_b32 v5, s33
s_mov_b64 exec, 1
buffer_store_dword v5, off, {DG}, 0 offset:{RS} sc1
s_mov_b64 exec, -1
s_branch M_sw_b
M_sw_w:""")
        wait_rel(a, "M_sw", RS, 5, 2, False)
        a("""s_and_b32 s33, s33, 1
s_xor_b32 s24, s24, s33
s_xor_b32 s2, s2, s33
M_sw_done:""")
    a(f"""s_cmp_lg_u32 s2, 248
s_cbranch_scc1 M_nocl
v_mov_b32 v8, 0
v_mov_b32 v9, 0
v_mov_b32 v10, 0
v_mov_b32 v11, 0
v_lshlrev_b32 v5, 4, v0
s_mov_b32 s33, {hex(OFF_RW)}
buffer_store_dwordx4 v[8:11], v5, {WSR}, s33 offen sc1
s_waitcnt vmcnt(0)
s_barrier
v_mov_b32 v8, 1
s_mov_b64 exec, 1
s_cmp_lg_u32 s26, 0
s_cbranch_scc1 M_cl2
buffer_store_dword v8, off, {DG}, 0 offset:{RC} sc1
M_cl2:
s_mov_b64 exec, -1
M_nocl:""")
    a("""s_mov_b32 s27, s25
s_cmp_eq_u32 s24, 0
s_cbranch_scc1 M_misc
s_sub_u32 s3, s24, 1
s_lshl_b32 s3, s3, 5
s_add_u32 s3, s3, s25
s_mul_i32 s34, s3, 293
s_lshr_b32 s34, s34, 11
s_mul_i32 s35, s34, 7
s_sub_u32 s35, s3, s35""")
    k1.gemm_body(a, False)
    a("M_join:\ns_waitcnt vmcnt(0)\ns_barrier")
    if prof: a("s_memrealtime s[92:93]")
    a(f"""s_cmp_lg_u32 s26, 0
s_cbranch_scc1 M_a2
s_and_b32 s35, s34, 3
s_lshl_b32 s35, s35, 3
s_lshl_b32 s36, 1, s35
s_and_b32 s37, s34, 28
s_mov_b64 exec, 1
v_mov_b32 v5, s36
buffer_load_dword v6, off, {DG}, 0 offset:{RC} sc1
buffer_atomic_add v5, off, {DG}, s37 offset:{CW} sc0 sc1
s_waitcnt vmcnt(0)
v_readfirstlane_b32 s33, v5
s_lshr_b32 s33, s33, s35
s_and_b32 s33, s33, 255
s_cmp_lg_u32 s33, 6
s_cbranch_scc1 M_a2x
""")
    a("v_readfirstlane_b32 s33, v6\ns_cmp_lg_u32 s33, 0\ns_cbranch_scc1 M_cert_b")
    wait_rel(a, "M_cert", RC, wg=False)
    a(f"""s_lshl_b32 s36, s34, 7
s_add_u32 s36, s36, {hex(OFF_RW)}
v_mov_b32 v5, 1
buffer_store_dword v5, off, {WSR}, s36 offset:4 sc1
M_a2x:
s_mov_b64 exec, -1
M_a2:
s_cmp_eq_u32 s24, 1
s_cbranch_scc1 M_img
s_add_u32 s27, s25, 32
s_cmp_lg_u32 s24, 7
s_cbranch_scc1 M_go
M_misc:""")
    k1.misc_body(a)
    a("s_waitcnt vmcnt(0) lgkmcnt(0)\ns_barrier")
    if prof: a("s_memrealtime s[92:93]")
    arrive(a, "M_am", CM, 64, RM, 5)
    a("s_cmp_lg_u32 s24, 0\ns_cbranch_scc1 M_go")
    arrive(a, "M_am1", CM1, 32, RM1, 5)
    a("s_branch M_go\nM_img:\ns_mov_b32 s34, s25")
    k1.img_body(a)
    a("s_waitcnt vmcnt(0) lgkmcnt(0)\ns_barrier")
    arrive(a, "M_ai", CI, 32, RI, 5)
    a("M_go:")
    if prof: a("s_memrealtime s[90:91]\ns_memtime s[94:95]\ns_getreg_b32 s101, hwreg(HW_REG_XCC_ID)\ns_waitcnt lgkmcnt(0)\ns_sub_u32 s100, s94, s100\ns_lshl_b32 s101, s101, 24\ns_or_b32 s100, s100, s101")
    lane_consts(a)
    if k1.OPT.get("p0only"): a("s_endpgm")
    tgt = lambda r: f"R_{r}" if r in roles else "M_end"
    a(f"""s_waitcnt lgkmcnt(0)
s_cmp_lg_u32 s24, 0
s_cbranch_scc1 M_worker
s_mov_b32 s27, s25
s_cmp_lt_u32 s25, 16
s_cbranch_scc1 {tgt('A')}
s_sub_u32 s27, s25, 16
s_cmp_lt_u32 s25, 30
s_cbranch_scc1 {tgt('B')}
s_branch {tgt('H')}
M_worker:
s_add_u32 s27, s25, 32
s_cmp_eq_u32 s24, 7
s_cbranch_scc1 {tgt('F')}
s_mov_b32 s27, s25
s_cmp_eq_u32 s24, 1
s_cbranch_scc1 {tgt('F')}
s_cmp_eq_u32 s24, 6
s_cbranch_scc1 {tgt('L')}
s_sub_u32 s29, s24, 2
s_cmp_lt_u32 s25, 24
s_cbranch_scc1 M_w3
s_lshl_b32 s27, s29, 3
s_add_u32 s27, s27, s25
s_add_u32 s27, s27, 8
s_branch {tgt('L')}
M_w3:
s_sub_u32 s30, s25, 12
s_cmp_lt_u32 s25, 12
s_cselect_b32 s30, s25, s30
s_mul_i32 s31, s30, 43
s_lshr_b32 s31, s31, 7
s_mul_i32 s28, s31, 3
s_sub_u32 s28, s30, s28
s_lshl_b32 s27, s29, 2
s_add_u32 s27, s27, s31
s_cmp_lt_u32 s25, 12
s_cbranch_scc1 {tgt('Z')}
s_branch {tgt('T')}
M_end:
s_endpgm""")
    if "A" in roles: team.role_A(a, force, prof)
    if "B" in roles: team.role_B(a, force, prof)
    if "H" in roles: team.role_H(a)
    if "Z" in roles: role_Z(a)
    if "T" in roles:
        import workers; workers.role_T(a)
    if "L" in roles:
        import workers; workers.role_L(a)
    if "F" in roles:
        import workers; workers.role_F(a)
    if prof:
        L = []
        for l in a.lines:
            if l == "s_endpgm" and L and L[-1] != "M_end:":
                L += ["s_memrealtime s[96:97]", "s_lshl_b32 s95, s2, 5", "s_add_u32 s95, s95, 0x4100000", "s_waitcnt lgkmcnt(0)",
                      "v_mov_b32 v16, s98", "v_mov_b32 v17, s96", "v_mov_b32 v18, s92", "v_mov_b32 v19, s90", "s_mov_b64 exec, 1",
                      f"buffer_store_dwordx4 v[16:19], off, {WSR}, s95", "v_mov_b32 v20, s76", "v_mov_b32 v21, s78", "v_mov_b32 v22, s88", "v_mov_b32 v23, s100" if k1.OPT.get("fq") else "v_mov_b32 v23, s82",
                      f"buffer_store_dwordx4 v[20:23], off, {WSR}, s95 offset:16"]
            L.append(l)
        a.lines = L
    if k1.OPT.get("hp"):
        L = []
        for l in a.lines:
            if l == "RB_next:":
                L += [l, "s_cmp_lg_u32 s40, 1", "s_cbranch_scc1 RB_hp1", "s_memrealtime s[94:95]", "RB_hp1:", "s_cmp_lg_u32 s40, 63", "s_cbranch_scc1 RB_hp2", "s_memrealtime s[92:93]", "RB_hp2:"]
                continue
            if l == "M_go:": L += [l, "s_memrealtime s[90:91]"]; continue
            if l == "RB_wdone:": L += [l, "s_memrealtime s[88:89]"]; continue
            if l == "RB_loop:": L += ["s_memrealtime s[82:83]", l]; continue
            if l == "RB_last:":
                L += [l, "s_cmp_lg_u32 s2, 128", "s_cbranch_scc1 RB_hp3", "s_waitcnt lgkmcnt(0)"]
                for k, r in enumerate((90, 88, 82, 94, 92)): L += [f"s_sub_u32 s{r}, s{r}, s98", f"v_mov_b32 v{116+k}, s{r}"]
                L += [f"buffer_store_dwordx4 v[116:119], off, {DG}, 0 sc1", f"buffer_store_dword v120, off, {DG}, 0 offset:44 sc1", "RB_hp3:"]
                continue
            L.append(l)
        a.lines = L
    j0 = a.lines.index("M_end:")
    for k in range(j0, len(a.lines)):
        l = a.lines[k]
        if l.startswith("buffer_load") and WSR in l and " sc1" not in l:
            a.lines[k] = l[:-4] + " sc1 lds" if l.endswith(" lds") else l + " sc1"
    asmlib.MFMA_STATES = 3
    txt = a.finish()
    asmlib.MFMA_STATES = 1
    import re
    txt = re.sub(r"\b(M_\w+|K1_\w+|R_\w+|R[ABHZTLF]_\w+)\b", lambda m: f"{name}_{m.group(1)}", txt)
    return txt + kd(name, 512, 256)
```

```python
from main_roles import *

DBG = AUX
NTEAM = 31
MB = 0
TB = 7168
TW = 6400; PS = 1568; GS = 392
SB = TB + 4*TW
RB = 7168
WLB = RB + 4096

def team_common(a, tagp, two_stage=False):
    a(f"""s_getreg_b32 s33, hwreg(HW_REG_XCC_ID)
s_and_b32 s33, s33, 15
s_lshl_b32 s33, 1, s33
s_cmp_lg_u32 s26, 0
s_cbranch_scc1 {tagp}_reg_done
s_mov_b64 exec, 1
v_mov_b32 v5, s33
buffer_atomic_or v5, off, {DG}, 0 offset:{CMASK} sc0 sc1
v_mov_b32 v7, 1
s_waitcnt vmcnt(0)
buffer_atomic_add v7, off, {DG}, 0 offset:{CT} sc0 sc1
s_waitcnt vmcnt(0)
v_readfirstlane_b32 s33, v7
s_cmp_lg_u32 s33, {NTEAM-1}
s_cbranch_scc1 {tagp}_reg_x
v_mov_b32 v5, 0
buffer_atomic_or v5, off, {DG}, 0 offset:{CMASK} sc0 sc1
s_waitcnt vmcnt(0)
buffer_store_dword v5, off, {DG}, 0 offset:{RT_} sc1
{tagp}_reg_x:
s_mov_b64 exec, -1
{tagp}_reg_done:""")
    for j in range(7):
        if two_stage and j < 4:
            a(f"s_add_u32 s33, s26, {j}\ns_and_b32 s33, s33, 3\ns_lshl_b32 s{50+j}, s33, 11")
        elif two_stage:
            a(f"""s_add_u32 s33, s26, {j-4}
s_sub_u32 s34, s33, 3
s_cmp_ge_u32 s33, 3
s_cselect_b32 s33, s34, s33
s_lshl_b32 s33, s33, 11
s_add_u32 s{50+j}, s33, 1024""")
        else:
            a(f"""s_lshl_b32 s33, s26, 1
s_add_u32 s33, s33, {j}
s_sub_u32 s34, s33, 7
s_cmp_ge_u32 s33, 7
s_cselect_b32 s33, s34, s33
s_lshl_b32 s{50+j}, s33, 10""")

def team_mode(a, tagp, force=None, rword=RM):
    wait_rel(a, tagp + "_im", rword, 12, 8, False)
    wait_rel(a, tagp + "_mode", RT_, 12, 8, False)
    a("""s_waitcnt vmcnt(0)
s_bcnt1_i32_b32 s33, s33
s_cmp_eq_u32 s33, 1
s_cselect_b32 s49, 1, 0""")
    if force is not None: a(f"s_mov_b32 s49, {force}")

def poll_m(a, tag, M, depth=1, gap=1, first_only=False):
    rnd = f"""buffer_load_dwordx4 v[{M}:{M+3}], v2, {WSR}, s44 offen sc1
buffer_load_dwordx4 v[{M+4}:{M+7}], v2, {WSR}, s45 offen sc1"""
    if first_only:
        l0, l1 = rnd.split("\n")
        for k in range(depth):
            a(l0)
            if k < depth-1: a("s_nop 15\ns_nop 3")
        a(f"""{tag}:
s_waitcnt vmcnt({depth-1})
v_max3_u32 v14, v{M}, v{M+1}, v{M+2}
v_max_u32 v14, v14, v{M+3}
v_cmp_eq_u32 vcc, -1, v14
{l0}
s_cbranch_vccnz {tag}
{l1}
ds_write_b128 v12, v[{M}:{M+3}] offset:{MB}""")
        return l1
    for k in range(depth):
        a(rnd)
        if k < depth-1:
            for g in range(gap): a("s_nop 7")
    a(f"""{tag}:
s_waitcnt vmcnt({2*depth-1})
v_max3_u32 v14, v{M}, v{M+1}, v{M+2}
s_waitcnt vmcnt({2*depth-2})
v_max3_u32 v15, v{M+4}, v{M+5}, v{M+6}
v_max3_u32 v14, v{M+3}, v{M+7}, v14
v_max_u32 v14, v14, v15
v_cmp_eq_u32 vcc, -1, v14
{rnd}
s_cbranch_vccnz {tag}
ds_write_b128 v12, v[{M}:{M+3}] offset:{MB}
ds_write_b128 v13, v[{M+4}:{M+7}] offset:{MB}""")

HP = 7168
HM = 7168 + 64
def hint_wait(a, tag, voff, vdst, soff, imm, depth=3, delay=0):
    ld = f"buffer_load_dword v{vdst}, v{voff}, {WSR}, {soff} offen offset:{imm} sc1"
    a(f"s_cmp_eq_u32 s49, 0\ns_cbranch_scc1 {tag}_done")
    if OPT.get("h1"): a(f"s_cmp_lg_u32 s26, 0\ns_cbranch_scc1 {tag}_bar")
    for k in range(depth):
        a(ld)
        if k < depth-1: a("s_nop 15")
    a(f"""{tag}:
s_waitcnt vmcnt({depth-1})
v_cmp_eq_u32 vcc, -1, v{vdst}
{ld}
s_cbranch_vccnz {tag}""")
    for k in range(delay // 64): a("s_nop 15")
    if delay % 64: a(f"s_nop {delay % 64 // 4 - 1}")
    if OPT.get("h1"): a(f"{tag}_bar:\ns_barrier")
    a(f"{tag}_done:")
def hint_send(a, soff, imm, reg):
    a(f"""s_mov_b64 exec, 1
buffer_store_dword v{reg}, off, {WSR}, {soff} offset:{imm}
s_mov_b64 exec, -1""")

def xstamp(a, on, reg):
    if on == 4: a(f"s_memtime s[{reg}:{reg+1}]")
def stamp(a, on, idx, sreg=60):
    if on == 4:
        a(f"s_memtime s[{sreg+2*idx}:{sreg+2*idx+1}]")
        if idx == 3: a("s_memrealtime s[74:75]")
    if on == 2: a(f"s_memtime s[{sreg+2*idx}:{sreg+2*idx+1}]")
    if on == 3: a(f"s_memrealtime s[{sreg+2*idx}:{sreg+2*idx+1}]")
    if on == 1 and idx == 3: a(f"s_memrealtime s[{sreg+2*idx}:{sreg+2*idx+1}]\ns_memtime s[{sreg}:{sreg+1}]")

PLOG = 140*1024
def prof_log(a, M):
    a(f"""s_waitcnt lgkmcnt(0)
s_lshl_b32 s33, s26, 6
s_add_u32 s33, s33, s40
s_lshl_b32 s33, s33, 4
s_add_u32 s33, s33, {PLOG}
v_mov_b32 v{M}, s60
v_mov_b32 v{M+1}, s62
v_mov_b32 v{M+2}, s64
v_mov_b32 v{M+3}, s66
v_mov_b32 v{M+4}, s33
ds_write_b128 v{M+4}, v[{M}:{M+3}]
v_mov_b32 v{M}, s74
v_mov_b32 v{M+1}, s76
v_mov_b32 v{M+2}, s78
ds_write_b96 v{M+4}, v[{M}:{M+2}] offset:4096""")
def prof_dump(a, M, cu):
    a(f"""s_lshl_b32 s33, s26, 10
s_add_u32 s33, s33, {PLOG}
v_add_u32 v{M+4}, s33, v2
s_waitcnt lgkmcnt(0)
ds_read_b128 v[{M}:{M+3}], v{M+4}
s_add_u32 s33, s27, {cu}
s_lshl_b32 s33, s33, 2
s_add_u32 s33, s33, s26
s_lshl_b32 s33, s33, 10
s_add_u32 s33, s33, {hex(0x4000000)}
s_waitcnt lgkmcnt(0)
buffer_store_dwordx4 v[{M}:{M+3}], v2, {WSR}, s33 offen
ds_read_b128 v[{M+8}:{M+11}], v{M+4} offset:4096
s_add_u32 s33, s33, 0x80000
s_waitcnt lgkmcnt(0)
buffer_store_dwordx4 v[{M+8}:{M+11}], v2, {WSR}, s33 offen""")

OOB = 0x40000000
DPM = "row_mask:0xf bank_mask"
def role_A(a, force=None, prof=False):
    M = 16; T = 44; XK = 72; S = 100; MK = 112
    a("R_A:")
    team_common(a, "RA", True)
    tile_map(a)
    def a_weights():
        a(f"""s_mul_i32 s34, s27, 28
s_add_u32 s35, s34, s31
s_add_u32 s34, s34, s30
s_mul_i32 s34, s34, {14*1024}
s_mul_i32 s35, s35, {14*1024}""")
        for sweep in range(2):
            wait_img(a, f"RA_wi{sweep}", "s27", v=12, word=sweep, cert=not sweep)
            if prof == 1: a(f"s_memrealtime s[{76+2*sweep}:{77+2*sweep}]")
            for j in range(7):
                a(f"s_cmp_lt_u32 s{50+j}, 4096\ns_cbranch_scc{sweep} RA_sk{sweep}{j}")
                for lt in range(7):
                    base = "s34" if lt < 6 else "s35"
                    a(f"s_lshl_b32 s36, s{50+j}, 1\ns_add_u32 s36, s36, {base}")
                    if 0 < lt < 6: a(f"s_add_u32 s36, s36, {lt*14*1024}")
                    for e in range(2):
                        a(f"buffer_load_dwordx4 {wreg(lt*14+2*j+e)}, v2, {WSR}, s36 offen offset:{e*1024}")
                a(f"RA_sk{sweep}{j}:")
    a(f"""s_lshr_b32 s37, s30, 1
s_lshr_b32 s38, s31, 1
v_and_b32 v12, 7, v4
v_lshrrev_b32 v13, 3, v4
v_lshrrev_b32 v14, 2, v4
v_and_b32 v15, 3, v4
v_and_b32 v16, 1, v4
v_lshl_add_u32 v16, v14, 1, v16
v_lshlrev_b32 v16, 4, v16
v_lshl_add_u32 v16, v3, 7, v16
s_lshl_b32 s33, s37, 9
v_add_u32 v20, s33, v16
s_lshl_b32 s33, s38, 9
s_lshl_b32 s34, s32, 3
s_add_u32 s33, s33, s34
v_add_u32 v21, s33, v16
s_mul_i32 s33, s26, {TW}
s_add_u32 s33, s33, {TB}
v_mul_u32_u24 v5, {GS}, v14
v_lshl_add_u32 v5, v15, 5, v5
v_lshl_add_u32 v5, v3, 3, v5
v_add_u32 v5, s33, v5
v_mul_u32_u24 v6, {GS}, v3
v_lshl_add_u32 v6, v14, 5, v6
v_lshl_add_u32 v6, v15, 3, v6
v_add_u32 v6, s33, v6
v_lshl_add_u32 v7, v3, 1, v13
v_add_u32 v7, v7, v12
v_and_b32 v7, 7, v7
v_lshl_add_u32 v7, v12, 3, v7
v_lshlrev_b32 v7, 4, v7
s_lshl_b32 s33, s26, 10
s_add_u32 s33, s33, {SB}
v_add_u32 v7, s33, v7
v_lshrrev_b32 v17, 3, v1
v_and_b32 v18, 7, v1
v_add_u32 v8, v17, v18
v_and_b32 v8, 7, v8
v_lshl_add_u32 v8, v17, 3, v8
v_lshlrev_b32 v8, 4, v8
v_add_u32 v8, {SB}, v8
s_lshl_b32 s33, s38, 10
s_lshl_b32 s34, s32, 3
s_add_u32 s33, s33, s34
v_add_u32 v11, s33, v2
s_lshl_b32 s33, s37, 10
v_add_u32 v10, s33, v2""")
    a(f"""v_lshrrev_b32 v19, 1, v18
v_and_b32 v22, 1, v18
s_and_b32 s33, s27, 3
s_lshr_b32 s34, s27, 2
s_mul_i32 s34, s34, 2560
v_lshlrev_b32 v25, 4, v17
v_add_u32 v25, s34, v25
s_lshl_b32 s35, s33, 9
v_lshl_add_u32 v9, v19, 7, v25
v_lshl_add_u32 v9, v22, 3, v9
v_add_u32 v9, s35, v9
s_lshl_b32 s35, s33, 7
s_add_u32 s35, s35, 2048
v_lshl_add_u32 v27, v19, 2, v25
v_add_u32 v27, s35, v27
v_mov_b32 v28, {hex(OOB)}
v_cmp_eq_u32 vcc, 0, v22
v_cndmask_b32 v0, v28, v27, vcc
v_mov_b32 v28, 0x44444444
v_mov_b32 v29, 0xeeeeeeee
v_cmp_eq_u32 vcc, 0, v13
v_cndmask_b32 v1, v29, v28, vcc
v_mov_b32 v3, v20
v_mov_b32 v4, v21
s_mov_b32 s40, 0
s_mov_b32 s41, {hex(OFF_MF)}
s_mov_b32 s42, {hex(OFF_PM)}
s_mov_b32 s43, {hex(OFF_XN)}""")
    def xk_loads():
        a(f"s_add_u32 s33, s43, {14*1024}")
        for kt in range(2):
            b = XK + 14*kt; so = "s33" if kt else "s43"
            for p in range(3):
                a(f"buffer_load_dwordx4 v[{b+4*p}:{b+4*p+3}], v10, {WSR}, {so} offen offset:{p*1024}")
            a(f"buffer_load_dwordx2 v[{b+12}:{b+13}], v11, {WSR}, {so} offen")
    team_mode(a, "RA", force, RM1)
    xk_loads()
    a_weights()
    if prof == 1: a("s_waitcnt vmcnt(0)\ns_memrealtime s[88:89]\ns_memrealtime s[82:83]")
    for i in range(28): a(f"v_mov_b32 v{T+i}, 0")
    a(f".p2align {OPT.get('al', 6)}")
    for k in range(int(OPT.get('aoff', 0))): a("s_nop 0")
    a("RA_loop:")
    a("""s_add_u32 s44, s41, s50
s_add_u32 s45, s41, s54
v_add_u32 v12, s50, v2
v_add_u32 v13, s54, v2""")
    AD = int(OPT.get("adel", 384))
    if AD // 64: a(f"s_sleep {AD // 64}")
    if AD % 64: a(f"s_nop {AD % 64 // 4 - 1}")
    DEP = int(OPT.get("ad", 3))
    l0 = f"buffer_load_dwordx4 v[{M}:{M+3}], v2, {WSR}, s44 offen sc1"
    l1 = f"buffer_load_dwordx4 v[{M+16}:{M+19}], v2, {WSR}, s45 offen sc1"
    for k in range(DEP):
        a(l0)
        if k < DEP-1:
            for g in range(int(OPT.get("asp", 80)) // 16): a("s_nop 3")
    if int(OPT.get("nri", 1)):
        a(f"""s_branch RA_poll
RA_poll0:
{l0}
RA_poll:
s_waitcnt vmcnt({DEP-1})
v_max3_u32 v14, v{M}, v{M+1}, v{M+2}
v_max_u32 v14, v14, v{M+3}
v_cmp_eq_u32 vcc, -1, v14
ds_write_b128 v12, v[{M}:{M+3}] offset:{MB}
s_cbranch_vccnz RA_poll0
{l1}""")
    else:
        a(f"""RA_poll:
s_waitcnt vmcnt({DEP-1})
v_max3_u32 v14, v{M}, v{M+1}, v{M+2}
v_max_u32 v14, v14, v{M+3}
v_cmp_eq_u32 vcc, -1, v14
{l0}
s_cbranch_vccnz RA_poll
{l1}
ds_write_b128 v12, v[{M}:{M+3}] offset:{MB}""")
    stamp(a, prof, 0)
    def sm(lt, j):
        a(f"v_smfmac_f32_16x16x64_bf16 v[{T+4*lt}:{T+4*lt+3}], v[{M+4*j}:{M+4*j+3}], {wreg(lt*14+2*j, 8)}, v1")
    ad = {1: MK+7, 2: MK+6, 3: MK+5, 5: S, 6: S+1}
    def rdm(j): a(f"ds_read_b128 v[{M+4*j}:{M+4*j+3}], v{ad[j]} offset:{MB}")
    B1 = int(OPT.get("b1pos", 4))
    adds = [f"v_add_u32 v{ad[j]}, s{50+j}, v2" for j in (1, 2, 3, 5, 6)]
    for lt in range(B1):
        sm(lt, 0)
        if adds: a(adds.pop(0))
    a("s_waitcnt lgkmcnt(0)\ns_barrier")
    xstamp(a, prof, 76)
    rdl = [1, 2, 3]
    rdm(rdl.pop(0))
    for lt in range(B1, 7):
        sm(lt, 0)
        if rdl: rdm(rdl.pop(0))
        elif adds: a(adds.pop(0))
    a(f"s_waitcnt lgkmcnt({2-len(rdl)})")
    C2 = int(OPT.get("c2", 7))
    chk2 = f"""s_waitcnt vmcnt(0)
v_max3_u32 v14, v{M+16}, v{M+17}, v{M+18}
v_max_u32 v14, v14, v{M+19}
v_cmp_eq_u32 vcc, -1, v14
ds_write_b128 v13, v[{M+16}:{M+19}] offset:{MB}"""
    cl = chk2.split("\n"); cl = [cl[0] + "\n" + cl[1]] + cl[2:] + ["s_cbranch_vccnz RA_p1r\nRA_p1b:"]
    K3 = int(OPT.get("k3", 1))
    seq = [(lt, j) for j in range(1, 3+K3) for lt in range(7)]
    B2 = C2 + 3 + int(OPT.get("b2d", 5))
    post = {B2+1: lambda: rdm(6), B2+2: lambda: a(f"ds_read_b128 v[{MK}:{MK+3}], v3 offset:{MB}"),
            B2+3: lambda: a(f"ds_read_b128 v[{MK+4}:{MK+7}], v3 offset:{MB+512}")}
    assert B2 + 3 < len(seq)
    for n, (lt, j) in enumerate(seq):
        if n == 7: a(f"s_waitcnt lgkmcnt({2 if C2+3 < 7 else 1})")
        if n == 14 and B2 >= 14: a(f"s_waitcnt lgkmcnt({1 if C2+3 < 14 else 0})")
        sm(lt, j)
        if rdl: rdm(rdl.pop(0))
        elif adds and n < C2: a(adds.pop(0))
        if C2 <= n < C2 + 5: a(cl[n-C2])
        if n == B2:
            a("s_waitcnt lgkmcnt(0)\ns_barrier"); rdm(5)
        if n in post: post[n]()
    assert not adds
    def cvt(lt, k): a(f"v_cvt_pk_bf16_f32 v{14+k}, v{T+4*lt+2*k}, v{T+4*lt+2*k+1}")
    def wr(lt): a(f"ds_write_b64 v5, v[14:15] offset:{(lt>>1)*PS + (lt&1)*128}")
    def tr(p, hh): a(f"ds_read_b64_tr_b16 v[{T+8*p+2*hh}:{T+8*p+2*hh+1}], v6 offset:{p*PS + hh*128}")
    def dense(p, kt):
        d = S + 4*kt; c = "0" if p == 0 else f"v[{d}:{d+3}]"
        if p < 3:
            key = f"v[{XK+14*kt+4*p}:{XK+14*kt+4*p+3}]" if kt < 2 else f"v[{MK+4*(p&1)}:{MK+4*(p&1)+3}]"
            a(f"v_mfma_f32_16x16x32_bf16 v[{d}:{d+3}], {key}, v[{T+8*p}:{T+8*p+3}], {c}")
        else:
            key = f"v[{XK+14*kt+12}:{XK+14*kt+13}]" if kt < 2 else f"v[{MK+4}:{MK+5}]"
            a(f"v_mfma_f32_16x16x16_bf16 v[{d}:{d+3}], {key}, v[{T+24}:{T+25}], {c}")
    if K3:
        for lt in range(7):
            for g, j in enumerate(range(4, 7)):
                if lt == 0 and g == 1: a("s_waitcnt lgkmcnt(2)")
                sm(lt, j)
                if g == 0 and lt >= 2: cvt(lt-2, 1)
                if g == 1 and lt >= 2: wr(lt-2)
                if g == 2 and lt in (3, 5): tr((lt-3) >> 1, 0); tr((lt-3) >> 1, 1)
                if g == 1 and lt == 5:
                    a("s_waitcnt lgkmcnt(2)")
                    for kt in range(3): dense(0, kt)
                    a(f"ds_read_b128 v[{MK}:{MK+3}], v3 offset:{MB+1024}")
                if g == 2 and lt >= 1: cvt(lt-1, 0)
        cvt(5, 1); wr(5); tr(2, 0); tr(2, 1)
        stamp(a, prof, 1)
        a("s_waitcnt lgkmcnt(4)")
        dense(1, 0); dense(1, 1); cvt(6, 0); cvt(6, 1); wr(6); tr(3, 0); dense(1, 2)
        a(f"ds_read_b64 v[{MK+4}:{MK+5}], v4 offset:{MB}")
        a("s_waitcnt lgkmcnt(3)")
        for kt in range(3): dense(2, kt)
        a("s_waitcnt lgkmcnt(0)")
        for kt in range(3): dense(3, kt)
    else:
        for lt in range(7):
            for g, j in enumerate(range(3, 7)):
                if lt == 0 and g == 2: a("s_waitcnt lgkmcnt(2)")
                sm(lt, j)
                if g == 0 and lt >= 2: wr(lt-2)
                if g == 1 and lt in (3, 5): tr((lt-3) >> 1, 0); tr((lt-3) >> 1, 1)
                if g == 2 and lt in (4, 6):
                    a("s_waitcnt lgkmcnt(1)")
                    for kt in range(3): dense((lt-4) >> 1, kt)
                    if lt == 4: a(f"ds_read_b128 v[{MK}:{MK+3}], v3 offset:{MB+1024}")
                    else: a(f"ds_read_b64 v[{MK+4}:{MK+5}], v4 offset:{MB}")
                if g == 2 and lt >= 1: cvt(lt-1, 0)
                if g == 3 and lt >= 1: cvt(lt-1, 1)
        wr(5)
        stamp(a, prof, 1)
        tr(2, 0); tr(2, 1)
        cvt(6, 0); cvt(6, 1); wr(6); tr(3, 0)
        a("s_waitcnt lgkmcnt(2)")
        for kt in range(3): dense(2, kt)
        a("s_waitcnt lgkmcnt(0)")
        for kt in range(3): dense(3, kt)
    for r in range(4): a(f"v_add_f32_dpp v{S+r}, v{S+r}, v{S+r} row_ror:8 {DPM}:0x3")
    for r in range(4): a(f"v_add_f32_dpp v{S+r}, v{S+4+r}, v{S+4+r} row_ror:8 {DPM}:0xc")
    a(f"""v_add_f32_dpp v{S+8}, v{S+8}, v{S+8} row_ror:8 {DPM}:0x3
ds_write_b128 v7, v[{S}:{S+3}]
v_add_f32_dpp v{S+8}, v{S+9}, v{S+9} row_ror:8 {DPM}:0xc
ds_write_b32 v7, v{S+8} offset:4096""")
    xstamp(a, prof, 78)
    a(f"""s_add_u32 s40, s40, 1
s_add_u32 s41, s41, 8192
s_add_u32 s43, s43, {32*896}
s_cmp_lg_u32 s26, 0
s_waitcnt vmcnt(0) lgkmcnt(0)
s_barrier
s_cbranch_scc1 RA_other""")
    if not OPT.get("ack"): stamp(a, prof, 2)
    for w in range(4): a(f"ds_read_b128 v[{M+4*w}:{M+4*w+3}], v8 offset:{1024*w}")
    for w in range(4): a(f"ds_read_b32 v{M+16+w}, v8 offset:{4096+1024*w}")
    X0, Y, R, L, F = M, M+16, M+20, M+22, M+23
    q1, q2, q3 = ("quad_perm:[1,0,3,2]", "quad_perm:[2,3,0,1]", "row_half_mirror")
    a(f"""s_cmp_eq_u32 s49, 0
s_waitcnt lgkmcnt(6)
v_pk_add_f32 v[{M}:{M+1}], v[{M}:{M+1}], v[{M+4}:{M+5}]
v_pk_add_f32 v[{M+2}:{M+3}], v[{M+2}:{M+3}], v[{M+6}:{M+7}]
s_waitcnt lgkmcnt(4)
v_pk_add_f32 v[{M+8}:{M+9}], v[{M+8}:{M+9}], v[{M+12}:{M+13}]
v_pk_add_f32 v[{M+10}:{M+11}], v[{M+10}:{M+11}], v[{M+14}:{M+15}]
v_pk_add_f32 v[{M}:{M+1}], v[{M}:{M+1}], v[{M+8}:{M+9}]
v_pk_add_f32 v[{M+2}:{M+3}], v[{M+2}:{M+3}], v[{M+10}:{M+11}]
s_waitcnt lgkmcnt(0)
v_pk_add_f32 v[{Y}:{Y+1}], v[{Y}:{Y+1}], v[{Y+2}:{Y+3}]
v_max3_f32 v{L}, v{M}, v{M+1}, v{M+2}
v_add_f32 v{Y}, v{Y}, v{Y+1}
v_max3_f32 v{L}, v{M+3}, v{Y}, v{L}
v_sub_f32 v{Y}, v{Y}, v{L}
v_sub_f32 v{M}, v{M}, v{L}
v_max_f32_dpp v{F}, v{L}, v{L} {q1} {DPM}:0xf
v_exp_f32 v{Y}, v{Y}
v_sub_f32 v{M+1}, v{M+1}, v{L}
v_max_f32_dpp v{F}, v{F}, v{F} {q2} {DPM}:0xf
v_exp_f32 v{M}, v{M}
v_sub_f32 v{M+2}, v{M+2}, v{L}
v_max_f32_dpp v{F}, v{F}, v{F} {q3} {DPM}:0xf
v_exp_f32 v{M+1}, v{M+1}
v_sub_f32 v{M+3}, v{M+3}, v{L}
v_sub_f32 v{F}, v{L}, v{F}
v_exp_f32 v{M+2}, v{M+2}
v_add_f32 v{L}, v{Y}, v{M}
v_exp_f32 v{M+3}, v{M+3}
v_add_f32 v{L}, v{L}, v{M+1}
v_exp_f32 v{F}, v{F}
v_add_f32 v{L}, v{L}, v{M+2}
v_add_f32 v{L}, v{L}, v{M+3}
v_mul_f32 v{Y}, v{Y}, v{F}
v_mul_f32 v{L}, v{L}, v{F}
v_pk_mul_f32 v[{M}:{M+1}], v[{M}:{M+1}], v[{L}:{F}] op_sel:[0,1] op_sel_hi:[1,1]
v_pk_mul_f32 v[{M+2}:{M+3}], v[{M+2}:{M+3}], v[{L}:{F}] op_sel:[0,1] op_sel_hi:[1,1]
v_add_f32_dpp v{R}, v{L}, v{L} {q1} {DPM}:0xf
v_mov_b32_dpp v{Y+1}, v{Y} {q1} {DPM}:0xf
v_add_f32_dpp v{R}, v{R}, v{R} {q2} {DPM}:0xf
v_add_f32_dpp v{R}, v{R}, v{R} {q3} {DPM}:0xf
v_rcp_f32 v{R}, v{R}
v_pk_mul_f32 v[{M}:{M+1}], v[{M}:{M+1}], v[{R}:{R+1}] op_sel_hi:[1,0]
v_pk_mul_f32 v[{M+2}:{M+3}], v[{M+2}:{M+3}], v[{R}:{R+1}] op_sel_hi:[1,0]
v_pk_mul_f32 v[{Y}:{Y+1}], v[{Y}:{Y+1}], v[{R}:{R+1}] op_sel_hi:[1,0]
v_cvt_pk_bf16_f32 v{M}, v{M}, v{M+1}
v_cvt_pk_bf16_f32 v{M+1}, v{M+2}, v{M+3}
v_cvt_pk_bf16_f32 v{Y}, v{Y}, v{Y+1}
v_min_u32 v{M}, -2, v{M}
v_min_u32 v{M+1}, -2, v{M+1}
v_min_u32 v{Y}, -2, v{Y}
s_cbranch_scc1 RA_slow
buffer_store_dwordx2 v[{M}:{M+1}], v9, {WSR}, s42 offen
buffer_store_dword v{Y}, v0, {WSR}, s42 offen
RA_st:""")
    if OPT.get("ack"):
        stamp(a, prof, 2); a("s_waitcnt vmcnt(0)")
    stamp(a, prof, 3)
    a("s_barrier")
    a("s_add_u32 s42, s42, 10240")
    if OPT.get("xlat"): a("s_memtime s[62:63]\ns_waitcnt lgkmcnt(0)")
    for i in range(28): a(f"v_mov_b32 v{T+i}, 0")
    if int(OPT.get("xd", 0)): a(f"s_sleep {OPT['xd']}")
    if int(OPT.get("touch", 0)): a(f"buffer_load_dword v{S+2}, v9, {WSR}, s42 offen sc1")
    if not OPT.get("nox"): xk_loads()
    if OPT.get("xlat"): a("s_memtime s[64:65]\ns_waitcnt vmcnt(0)\ns_memtime s[66:67]")
    if prof: prof_log(a, M)
    a("""s_cmp_lt_u32 s40, 63
s_cbranch_scc1 RA_loop""")
    if prof: prof_dump(a, M, 0)
    a(f"""s_endpgm
RA_other:
s_cmp_lg_u32 s26, 1
s_cbranch_scc1 RA_st""")
    if int(OPT.get("phint", 0)):
        for k in range(int(OPT.get("plead", 128)) // 32): a("s_nop 7")
        a(f"s_lshl_b32 s33, s27, 2\ns_add_u32 s33, s33, s41\ns_sub_u32 s33, s33, 4096")
        hint_send(a, "s33", HP-4096, 1)
    a(f"""s_branch RA_st
RA_p1r:
{l1}
{chk2}
s_cbranch_vccnz RA_p1r
s_branch RA_p1b
RA_slow:
buffer_store_dwordx2 v[{M}:{M+1}], v9, {WSR}, s42 offen sc1
buffer_store_dword v{Y}, v0, {WSR}, s42 offen sc1
s_branch RA_st""")

def role_B(a, force=None, prof=False):
    M = 16; U = 44; Z = 76; UB = 108; TMP = 116; KEEP = 132; FLG = 134
    NREG = 46
    def opidx(t, j):
        if t < 6: return t*7 + j
        return 42 + (t-6)*2 + j if j < 2 else NREG + (t-6)*5 + (j-2)
    def breg(o, half=None):
        b = 8*o
        k, bb = ("a", b) if o < 32 else ("v", 144 + b - 256)
        if half is None: return f"{k}[{bb}:{bb+7}]"
        return f"{k}[{bb+4*half}:{bb+4*half+3}]"
    a("R_B:")
    team_common(a, "RB")
    a(f"""s_lshl_b32 s34, s26, 2
s_mul_i32 s34, s34, 28
s_lshl_b32 s35, s27, 1
s_add_u32 s34, s34, s35
s_mul_i32 s34, s34, {14*1024}
s_add_u32 s34, s34, {hex(OFF_WB)}
s_mul_i32 s37, s26, {20*1024}
s_add_u32 s37, s37, {WLB}""")
    wait_rel(a, "RB_wc", RC, wg=False)
    a(f"""s_lshl_b32 s38, s26, 9
s_add_u32 s38, s38, {hex(OFF_RW + 16*128)}
s_mov_b32 s39, 255
v_and_b32 v6, 3, v1
v_lshlrev_b32 v6, 7, v6
v_and_b32 v5, 4, v1
v_add_u32 v6, v6, v5
RB_wl:
buffer_load_dword v5, v6, {WSR}, s38 offen sc1
s_waitcnt vmcnt(0)
v_cmp_ne_u32 vcc, 0, v5
s_mov_b32 s33, vcc_lo
RB_wn:
s_and_b32 s33, s33, s39""")
    for un in range(8): a(f"s_bitcmp1_b32 s33, {un}\ns_cbranch_scc1 RB_wl{un}")
    a("s_sleep 8\ns_branch RB_wl")
    for un in range(8):
        hl, sweep = un & 3, un >> 2
        a(f"RB_wl{un}:\ns_bitset0_b32 s39, {un}\nbuffer_load_dword v5, v6, {WSR}, s38 offen sc1")
        if prof == 1: a("s_memrealtime s[78:79]")
        for j in range(7):
            a(f"s_cmp_lt_u32 s{50+j}, 4096\ns_cbranch_scc{sweep} RB_sk{un}{j}")
            for t in (2*hl, 2*hl+1):
                o = opidx(t, j)
                a(f"s_lshl_b32 s36, s{50+j}, 1\ns_add_u32 s36, s36, s34")
                off = ((t >> 1)*28 + (t & 1))*14*1024
                if off: a(f"s_add_u32 s36, s36, {off}")
                if o >= NREG:
                    a(f"s_add_u32 m0, s37, {(o-NREG)*2048}")
                for e in range(2):
                    if o < NREG: a(f"buffer_load_dwordx4 {breg(o, e)}, v2, {WSR}, s36 offen offset:{e*1024}")
                    else: a(f"buffer_load_dwordx4 v2, {WSR}, s36 offen offset:{e*1024} lds")
            a(f"RB_sk{un}{j}:")
        a(f"s_waitcnt vmcnt({12 if sweep else 16})\nv_cmp_ne_u32 vcc, 0, v5\ns_mov_b32 s33, vcc_lo\ns_cmp_lg_u32 s39, 0\ns_cbranch_scc1 RB_wn")
        if un < 7: a("s_branch RB_wdone")
    a("RB_wdone:")
    if prof == 1: a("s_mov_b32 s76, s78")
    a(f"""v_and_b32 v12, 7, v4
v_lshrrev_b32 v13, 3, v4
v_lshlrev_b32 v3, 7, v3
v_lshl_add_u32 v3, v12, 4, v3
v_lshl_add_u32 v5, v13, 9, v3
s_lshl_b32 s33, s26, 10
s_add_u32 s33, s33, {RB}
v_add_u32 v6, s33, v2
v_add_u32 v7, s37, v2
v_lshl_add_u32 v8, v13, 3, v3
s_lshl_b32 s33, s27, 9
v_add_u32 v8, s33, v8
v_mov_b32 v14, {hex(OOB)}
v_cmp_gt_u32 vcc, 64, v0
v_cndmask_b32 v4, v14, v8, vcc
v_cmp_eq_u32 vcc, 64, v0
v_cndmask_b32 v10, v14, 0, vcc
v_and_b32 v9, 3, v1
s_lshl_b32 s33, s26, 2
v_add_u32 v9, s33, v9
v_lshlrev_b32 v9, 2, v9
v_mov_b32 v11, 1
v_mov_b32 v28, 0x44444444
v_mov_b32 v29, 0xeeeeeeee
v_cmp_eq_u32 vcc, 0, v13
v_cndmask_b32 v1, v29, v28, vcc
s_mov_b32 s40, 0
s_mov_b32 s41, {hex(OFF_MF)}
s_mul_i32 s42, s26, 2560
s_add_u32 s42, s42, {hex(OFF_PM)}
s_lshl_b32 s43, s26, 2
s_mul_i32 s43, s43, 28
s_lshl_b32 s33, s27, 1
s_add_u32 s43, s43, s33
s_lshl_b32 s43, s43, 10
s_add_u32 s43, s43, {hex(OFF_Z)}
s_mul_i32 s46, s26, 28
s_add_u32 s46, s46, s33
s_lshl_b32 s46, s46, 10
s_add_u32 s46, s46, {hex(OFF_U - 4*28*1024)}
s_lshl_b32 s47, s26, 10
s_add_u32 s47, s47, {hex(OFF_ZF)}
s_mov_b32 s72, 0
s_mov_b32 s81, 0
s_lshl_b32 s48, s27, 2
s_add_u32 s48, s48, {hex(OFF_UF + 1024)}""")
    if prof == 1: a("s_waitcnt vmcnt(0)\ns_memrealtime s[88:89]")
    team_mode(a, "RB", force)
    if prof == 1: a("s_memrealtime s[82:83]")
    for i in range(32): a(f"v_mov_b32 v{U+i}, 0")
    a(f".p2align {OPT.get('al', 6)}")
    for k in range(int(OPT.get('boff', 0))): a("s_nop 0")
    a("RB_loop:")
    a(f"""s_add_u32 s44, s41, s50
s_add_u32 s45, s41, s51
v_add_u32 v12, s50, v2
v_add_u32 v13, s51, v2
s_add_u32 s58, s41, {hex(OFF_MX-OFF_MF)}
s_cmp_eq_u32 s40, 0
s_cselect_b32 s58, {hex(OOB)}, s58
s_cmp_lt_u32 s40, 61
s_cselect_b32 s57, {hex(OOB)}, s46
s_add_u32 s46, s46, {4*28*1024}
s_cmp_eq_u32 s40, 63
s_cselect_b32 s68, {hex(OOB)}, s43
s_cbranch_scc1 RB_zok
s_cmp_eq_u32 s81, 0
s_cbranch_scc1 RB_znp
v_and_b32 v140, v140, v141
v_and_b32 v142, v142, v143
v_and_b32 v140, v140, v142
v_cmp_eq_u32 vcc, 0, v140
s_ff1_i32_b64 s72, vcc
s_min_u32 s72, s72, 64
RB_znp:
s_cmp_lt_u32 s40, s72
s_cbranch_scc1 RB_zok
RB_zspin:
buffer_load_dwordx4 v[{TMP}:{TMP+3}], v2, {WSR}, s47 offen sc1
s_waitcnt vmcnt(0)
v_and_b32 v{TMP}, v{TMP}, v{TMP+1}
v_and_b32 v{TMP+2}, v{TMP+2}, v{TMP+3}
v_and_b32 v{TMP}, v{TMP}, v{TMP+2}
v_cmp_eq_u32 vcc, 0, v{TMP}
s_ff1_i32_b64 s72, vcc
s_min_u32 s72, s72, 64
s_cmp_lt_u32 s40, s72
s_cbranch_scc1 RB_zok
s_sleep 2
s_branch RB_zspin
RB_zok:
s_add_u32 s81, s40, 3
s_cmp_ge_u32 s81, s72
s_cselect_b32 s81, 1, 0
s_cmp_ge_u32 s72, 63
s_cselect_b32 s81, 0, s81
s_add_u32 s69, s68, {28*1024}
s_add_u32 s70, s68, {2*28*1024}
s_add_u32 s71, s68, {3*28*1024}""")
    slow = []
    if not OPT.get("noz"):
        for hl in range(4):
            for ctl in range(2):
                b = Z + (hl*2+ctl)*4
                slow.append(f"buffer_load_dwordx4 v[{b}:{b+3}], v2, {WSR}, s{68+hl} offen offset:{ctl*1024} {OPT.get('zld', 'sc1')}")
    slow += [f"buffer_store_dwordx2 v[{KEEP}:{KEEP+1}], v4, {WSR}, s58 offen sc1",
             f"s_cmp_lt_u32 s40, 61\ns_cbranch_scc1 RB_nou\nbuffer_store_dwordx4 v[{UB}:{UB+3}], v2, {WSR}, s57 offen sc1\n"
             f"buffer_store_dwordx4 v[{UB+4}:{UB+7}], v2, {WSR}, s57 offen offset:1024 sc1\nRB_nou:"]
    slow.append(f"s_cmp_eq_u32 s81, 0\ns_cbranch_scc1 RB_nozf\nbuffer_load_dwordx4 v[140:143], v2, {WSR}, s47 offen sc1\nRB_nozf:")
    if int(OPT.get("touch", 0)): slow.append(f"s_add_u32 s33, s41, 8192\nbuffer_load_dword v{FLG}, v8, {WSR}, s33 offen sc1")
    if OPT.get("ust"): slow = [x.replace(" sc1", " " + OPT["ust"].replace("+", " ")) if "store" in x else x for x in slow]
    if int(OPT.get("sfirst", 1)): slow = slow[8:] + slow[:8]
    if OPT.get("nou") == "1": slow = [x for x in slow if "store" not in x]
    if OPT.get("nou") == "2": slow = [x for x in slow if "store" not in x or "dwordx2" in x]
    if int(OPT.get("early", 0)):
        if OPT.get("slat"):
            a("s_memtime s[60:61]\ns_waitcnt lgkmcnt(0)")
            for x in slow: a(x)
            a("s_memtime s[62:63]\ns_waitcnt vmcnt(4)\ns_memtime s[64:65]\ns_waitcnt vmcnt(0)\ns_memtime s[66:67]\ns_waitcnt lgkmcnt(0)")
            prof_log(a, TMP)
            prof = 0
        else:
            for x in [slow[8]] + slow[:8] + slow[9:]: a(x)
        slow = []
    if int(OPT.get("bsleep", 0)): a(f"s_sleep {OPT['bsleep']}")
    BONE = int(OPT.get("bone", 0))
    bl1 = poll_m(a, "RB_poll", M, int(OPT.get("bd", 3 if BONE else 1)), 2, BONE)
    if not OPT.get("cnt"): stamp(a, prof, 0)
    def sm(t, j, src=None):
        a(f"v_smfmac_f32_16x16x64_bf16 v[{U+4*t}:{U+4*t+3}], v[{M+4*j}:{M+4*j+3}], {src or breg(opidx(t, j))}, v1")
    tmp = [0, 12, TMP+15, TMP+14, TMP+13] if BONE else [0, 12, 13, 14, 15]
    pre = [] if BONE else slow
    for t in range(8):
        sm(t, 0)
        if t < 5: a(f"v_add_u32 v{tmp[t]}, s{52+t}, v2")
        if pre and (t >= 5 or int(OPT.get("soon", 1))): a(pre.pop(0))
    if BONE:
        a(f"""RB_p1:
s_waitcnt vmcnt(0)
v_max3_u32 v14, v{M+4}, v{M+5}, v{M+6}
v_max_u32 v14, v14, v{M+7}
v_cmp_eq_u32 vcc, -1, v14
ds_write_b128 v13, v[{M+4}:{M+7}] offset:{MB}
s_cbranch_vccz RB_p1b
{bl1}
s_branch RB_p1
RB_p1b:""")
        for k in range(4): a(slow.pop(0))
    a("s_waitcnt lgkmcnt(0)\ns_barrier")
    rd = [f"ds_read_b128 v[{M+4*j}:{M+4*j+3}], v{tmp[j-2]} offset:{MB}" for j in range(2, 7)]
    def lw(k):
        b = TMP + 8*(k & 1)
        return [f"ds_read_b128 v[{b}:{b+3}], v7 offset:{k*2048}", f"ds_read_b128 v[{b+4}:{b+7}], v7 offset:{k*2048+1024}"]
    rd += lw(0)
    for t in range(8):
        sm(t, 1)
        if rd: a(rd.pop(0))
        if slow and (int(OPT.get("soon", 1)) > 1 or BONE): a(slow.pop(0))
    a("s_waitcnt lgkmcnt(2)")
    def xform(ctl):
        u = lambda hl, r: U + 4*(hl*2+ctl) + r
        o = UB + 4*ctl; L = []
        for r in range(4):
            L += [f"v_permlane32_swap_b32 v{u(0,r)}, v{u(2,r)}", f"v_permlane32_swap_b32 v{u(1,r)}, v{u(3,r)}"]
        for r in range(4):
            L += [f"v_add_f32 v{u(0,r)}, v{u(0,r)}, v{u(2,r)}", f"v_add_f32 v{u(1,r)}, v{u(1,r)}, v{u(3,r)}"]
        L += [f"v_cvt_pk_bf16_f32 v{o}, v{u(0,0)}, v{u(0,1)}", f"v_cvt_pk_bf16_f32 v{o+1}, v{u(0,2)}, v{u(0,3)}",
              f"v_cvt_pk_bf16_f32 v{o+2}, v{u(1,0)}, v{u(1,1)}", f"v_cvt_pk_bf16_f32 v{o+3}, v{u(1,2)}, v{u(1,3)}",
              f"v_permlane16_swap_b32 v{o}, v{o+2}", f"v_permlane16_swap_b32 v{o+1}, v{o+3}"]
        return L
    regl = [(t, j) for c in range(2) for t in (c, 2+c, 4+c) for j in range(2, 7)]
    x0 = xform(0)
    for k in range(10):
        f = (lw(k+1) if k < 9 else []) + ([slow.pop(0)] if slow else [])
        for (t, j) in regl[3*k:3*k+3]:
            sm(t, j)
            if f: a(f.pop(0))
            if k >= 6 and x0: a(x0.pop(0))
        a(f"s_waitcnt lgkmcnt({2 if k < 9 else 0})")
        b = TMP + 8*(k & 1)
        sm(6 + k//5, 2 + k % 5, f"v[{b}:{b+7}]")
        if k >= 5 and x0: a(x0.pop(0))
    assert not slow
    for l in x0 + xform(1): a(l)
    a(f"""s_cmp_eq_u32 s40, 63
s_cbranch_scc1 RB_last""")
    if not OPT.get("quick"): stamp(a, prof, 1)
    a(f"s_lshl_b32 s73, s27, 2\ns_add_u32 s73, s73, s26\ns_lshl_b32 s73, s73, 2\ns_add_u32 s73, s73, s41\ns_add_u32 s73, s73, {8192+4096}")
    E0, O0 = TMP, TMP+8
    def mf(d, b, p, first):
        a(f"v_mfma_f32_16x16x32_bf16 v[{d}:{d+3}], v[{b}:{b+3}], v[{p}:{p+3}], {'0' if first else f'v[{d}:{d+3}]'}")
    a(f"s_add_u32 s41, s41, 8192\ns_add_u32 s43, s43, {16*28*1024}\ns_add_u32 s40, s40, 1")
    L1 = f"buffer_load_dwordx4 v[{M}:{M+3}], v5, {WSR}, s42 offen sc1"
    L2 = f"buffer_load_dwordx4 v[{M+4}:{M+7}], v5, {WSR}, s42 offen offset:1024 sc1"
    L3 = f"buffer_load_dwordx4 v[{M+8}:{M+11}], v3, {WSR}, s42 offen offset:2048 sc1"
    MF = int(OPT.get("memfirst", 0))
    rnd = "\n".join([L3, L1, L2] if MF else [L1, L2, L3])
    a(rnd)
    for i in range(32): a(f"v_mov_b32 v{U+i}, 0")
    q = M+8 if MF else M
    a(f"""RB_pollp:
s_waitcnt vmcnt(2)
v_max3_u32 v14, v{q}, v{q+1}, v{q+2}
v_max_u32 v14, v14, v{q+3}
v_cmp_eq_u32 vcc, -1, v14
{rnd}
s_cbranch_vccnz RB_pollp""")
    xstamp(a, prof, 76)
    if MF:
        mf(E0, UB, M+8, True)
        a(f"s_cmp_eq_u32 s26, 0\ns_waitcnt vmcnt(4)\nv_max3_u32 v14, v{M}, v{M+1}, v{M+2}")
        mf(E0+4, UB+4, M+8, True); a(f"v_max_u32 v14, v14, v{M+3}")
        mf(O0, Z + 8, M, True)
        a("s_waitcnt vmcnt(3)")
        mf(E0, Z, M, False); a(f"v_max3_u32 v15, v{M+4}, v{M+5}, v{M+6}")
        mf(O0+4, Z + 12, M, True); a(f"v_max3_u32 v14, v14, v15, v{M+7}")
        mf(O0, Z + 24, M+4, False); a("v_cmp_eq_u32 vcc, -1, v14")
        mf(E0, Z + 16, M+4, False)
        mf(E0+4, Z + 4, M, False)
        mf(O0+4, Z + 28, M+4, False)
        mf(E0+4, Z + 20, M+4, False)
    else:
        mf(E0, Z, M, True); mf(O0, Z + 8, M, True)
        a("s_cmp_eq_u32 s26, 0\ns_waitcnt vmcnt(4)")
        mf(E0+4, Z + 4, M, True); a(f"v_max3_u32 v14, v{M+4}, v{M+5}, v{M+6}")
        mf(O0+4, Z + 12, M, True); a(f"v_max_u32 v14, v14, v{M+7}")
        a("s_waitcnt vmcnt(3)")
        mf(O0, Z + (3*2+0)*4, M+4, False); a(f"v_max3_u32 v15, v{M+8}, v{M+9}, v{M+10}")
        mf(E0, Z + (2*2+0)*4, M+4, False); a(f"v_max3_u32 v14, v14, v15, v{M+11}")
        mf(E0, UB, M+8, False); a("v_cmp_eq_u32 vcc, -1, v14")
        mf(O0+4, Z + (3*2+1)*4, M+4, False)
        mf(E0+4, Z + (2*2+1)*4, M+4, False)
        mf(E0+4, UB+4, M+8, False)
    a("s_cbranch_vccnz RB_pollp")
    X = 136
    for r in range(4): a(f"v_add_f32_dpp v{X+r}, v{O0+r}, v{E0+r} row_ror:8 {DPM}:0x3")
    if not OPT.get("cnt"): stamp(a, prof, 2)
    if OPT.get("hint"):
        if OPT.get("hw"):
            a(f"s_cmp_lg_u32 s26, {OPT['hw']}\ns_cbranch_scc1 RB_nohs")
        hint_send(a, "s73", HM-4096, 11)
        a("RB_nohs:")
    for r in range(4): a(f"v_add_f32_dpp v{X+r}, v{E0+4+r}, v{O0+4+r} row_ror:8 {DPM}:0xc")
    a(f"""s_cbranch_scc1 RB_w0
ds_write_b128 v6, v[{X}:{X+3}]
s_add_u32 s42, s42, 10240
s_waitcnt lgkmcnt(0)
s_barrier
s_branch RB_next
RB_w0:
s_add_u32 s42, s42, 10240
s_cmp_eq_u32 s49, 0
s_barrier""")
    xstamp(a, prof, 78)
    for w in range(1, 4):
        a(f"ds_read_b128 v[{TMP+4*w}:{TMP+4*w+3}], v2 offset:{RB + 1024*w}")
    a(f"""s_waitcnt lgkmcnt(2)
v_pk_add_f32 v[{TMP}:{TMP+1}], v[{X}:{X+1}], v[{TMP+4}:{TMP+5}]
v_pk_add_f32 v[{TMP+2}:{TMP+3}], v[{X+2}:{X+3}], v[{TMP+6}:{TMP+7}]
s_waitcnt lgkmcnt(0)
v_pk_add_f32 v[{TMP+8}:{TMP+9}], v[{TMP+8}:{TMP+9}], v[{TMP+12}:{TMP+13}]
v_pk_add_f32 v[{TMP+10}:{TMP+11}], v[{TMP+10}:{TMP+11}], v[{TMP+14}:{TMP+15}]
v_pk_add_f32 v[{TMP}:{TMP+1}], v[{TMP}:{TMP+1}], v[{TMP+8}:{TMP+9}]
v_pk_add_f32 v[{TMP+2}:{TMP+3}], v[{TMP+2}:{TMP+3}], v[{TMP+10}:{TMP+11}]
v_cvt_pk_bf16_f32 v{KEEP}, v{TMP}, v{TMP+1}
v_cvt_pk_bf16_f32 v{KEEP+1}, v{TMP+2}, v{TMP+3}
v_min_u32 v{KEEP}, -2, v{KEEP}
v_min_u32 v{KEEP+1}, -2, v{KEEP+1}
s_cbranch_scc1 RB_slow
buffer_store_dwordx2 v[{KEEP}:{KEEP+1}], v8, {WSR}, s41 offen
RB_pub:
s_cmp_lg_u32 s40, 63
s_cbranch_scc1 RB_next
s_add_u32 s33, s41, {hex(OFF_MX-OFF_MF)}
buffer_store_dwordx2 v[{KEEP}:{KEEP+1}], v8, {WSR}, s33 offen sc1
RB_next:""")
    stamp(a, prof, 3)
    if int(OPT.get("early", 0)): a("s_barrier")
    if prof: prof_log(a, TMP)
    a(f"""s_branch RB_loop
RB_slow:
buffer_store_dwordx2 v[{KEEP}:{KEEP+1}], v8, {WSR}, s41 offen sc1
s_branch RB_pub
RB_last:""")
    if prof or OPT.get('slat'): prof_dump(a, TMP, 16)
    a(f"""buffer_store_dwordx4 v[{UB}:{UB+3}], v2, {WSR}, s46 offen sc1
buffer_store_dwordx4 v[{UB+4}:{UB+7}], v2, {WSR}, s46 offen offset:1024 sc1
s_waitcnt vmcnt(0)
s_barrier
buffer_store_dword v11, v10, {WSR}, s48 offen sc1
s_endpgm""")

def role_H(a):
    ZA = int(OPT.get("za", 2))
    def zpref(tag):
        a(f"""{tag}:
buffer_load_dword v7, v13, {WSR}, s46 offen sc1
s_waitcnt vmcnt(0)
v_cmp_eq_u32 vcc, 0, v7
s_cbranch_vccz {tag}_go
s_sleep 8
s_branch {tag}
{tag}_go:
s_mov_b32 s33, s47""")
        for k in range(7):
            a(f"buffer_load_dword v8, v9, {WSR}, s33 offen {OPT.get('hz', '')}")
            if OPT.get("z64"): a(f"buffer_load_dword v8, v9, {WSR}, s33 offen offset:64 {OPT.get('hz', '')}")
            if k < 6: a("s_add_u32 s33, s33, 32768")
        a(f"s_add_u32 s46, s46, 16\ns_add_u32 s47, s47, {16*28*1024}")
    a("R_H:\ns_and_b32 s27, s27, 1")
    if not int(OPT.get("zp", 0)): a("s_cmp_lg_u32 s27, 0\ns_cbranch_scc1 M_end")
    team_common(a, "RH")
    init_wait(a, "RH_iw")
    a(f"""v_lshlrev_b32 v9, 7, v0
v_mov_b32 v6, 0
v_mov_b32 v10, {hex(OOB)}
s_cmp_eq_u32 s27, 0
s_cselect_b32 s33, 224, 0
s_cselect_b32 s34, 64, 0
s_cselect_b32 s35, 80, 0
v_cmp_gt_u32 vcc, s33, v0
v_cndmask_b32 v5, v10, v9, vcc
v_cmp_gt_u32 vcc, s34, v0
v_cndmask_b32 v11, v10, v9, vcc
v_cmp_gt_u32 vcc, s35, v0
v_cndmask_b32 v12, v10, v9, vcc
v_and_b32 v13, 3, v0
v_lshlrev_b32 v13, 2, v13
v_and_b32 v14, 4, v0
v_lshl_add_u32 v13, v14, 8, v13
v_cmp_eq_u32 vcc, 0, v0
v_cndmask_b32 v14, v10, 0, vcc
s_lshl_b32 s46, s27, 11
s_add_u32 s46, s46, {hex(OFF_ZF)}
s_mul_i32 s47, s27, {8*28*1024}
s_add_u32 s47, s47, {hex(OFF_Z)}
s_mov_b32 s40, 0
s_mov_b32 s41, {hex(OFF_MF)}
s_mov_b32 s43, {hex(OFF_XN + 32*896)}
s_mov_b32 s44, {hex(OFF_MF + 8192)}
s_mov_b32 s45, {hex(OFF_PM)}
buffer_load_dword v8, v5, {WSR}, s43 offen
buffer_load_dword v8, v11, {WSR}, s44 offen
buffer_load_dword v8, v12, {WSR}, s45 offen""")
    ZP = int(OPT.get("zp", 0))

    for k in range(ZA if ZP else 0): zpref(f"RH_z{k}")
    a(f"""RH_loop:
buffer_load_dword v7, v6, {WSR}, s41 offen sc1
s_waitcnt vmcnt(0)
v_readfirstlane_b32 s33, v7
s_cmp_lg_u32 s33, -1
s_cbranch_scc1 RH_go
s_sleep 4
s_branch RH_loop
RH_go:
v_mov_b32 v7, s40
s_mov_b32 s33, {hex(OFF_PROG)}
buffer_store_dword v7, v14, {WSR}, s33 offen sc1
s_add_u32 s43, s43, {32*896}
s_add_u32 s44, s44, 8192
s_add_u32 s45, s45, 10240
buffer_load_dword v8, v11, {WSR}, s44 offen
buffer_load_dword v8, v12, {WSR}, s45 offen
buffer_load_dword v8, v5, {WSR}, s43 offen
s_cmp_ge_u32 s40, {63-ZA}
s_cbranch_scc1 RH_noz""")
    if ZP: zpref("RH_zl")
    a(f"""RH_noz:
s_add_u32 s41, s41, 8192
s_add_u32 s40, s40, 1
s_cmp_lt_u32 s40, 62
s_cbranch_scc1 RH_loop
s_endpgm""")
```

```python
from main_roles import *
OOB = 0x40000000
DPM = "row_mask:0xf bank_mask:0xf"
NEGBIG = f32(-1e9*LOG2E)

def xrow_reduce(a, op, r, t):
    a(f"""v_mov_b32 v{t}, v{r}
v_permlane16_swap_b32 v{r}, v{t}
{op} v{r}, v{r}, v{t}
v_mov_b32 v{t}, v{r}
v_permlane32_swap_b32 v{r}, v{t}
{op} v{r}, v{r}, v{t}""")

def late_start(a, tag, step=1):
    init_wait(a, tag + "i")
    if not int(OPT.get("late", 1)): return
    a(f"""s_mov_b32 s33, {hex(OFF_MX + 8192*step)}
{tag}:
buffer_load_dword v5, off, {WSR}, s33 sc1
s_waitcnt vmcnt(0)
v_cmp_eq_u32 vcc, -1, v5
s_cbranch_vccz {tag}_go
s_sleep 32
s_branch {tag}
{tag}_go:""")

def role_T(a):
    KEY = 88; SX = 2*XB; SX2 = SX + 16384
    Sa = lambda kt, t: acc(2*kt+1, t)
    a("R_T:")
    late_start(a, "RT_late", int(OPT.get("tstep", 1)))
    tile_map(a)
    a(f"""s_mov_b32 s40, s28
s_mul_i32 s43, s26, {7*1024}
s_mul_i32 s41, s40, {XB}
s_add_u32 s41, s41, s43
s_add_u32 s41, s41, {hex(OFF_XP)}
s_mov_b32 s42, s43
s_mov_b32 s44, 0""")
    x_dma(a, "s41", "s42")
    load_weights_natural(a, OFF_WA)
    a(f"""s_lshr_b32 s37, s30, 1
s_lshr_b32 s38, s31, 1
s_lshl_b32 s33, s37, 10
v_add_u32 v5, s33, v2
s_lshl_b32 s33, s38, 10
s_lshl_b32 s34, s32, 3
s_add_u32 s33, s33, s34
v_add_u32 v6, s33, v2
v_lshrrev_b32 v16, 2, v4
v_and_b32 v17, 1, v4
v_lshl_add_u32 v17, v16, 1, v17
v_lshlrev_b32 v17, 4, v17
v_lshl_add_u32 v17, v3, 7, v17
s_lshl_b32 s33, s37, 9
v_add_u32 v8, s33, v17
s_lshl_b32 s33, s38, 9
s_add_u32 s33, s33, s34
v_add_u32 v9, s33, v17
s_lshl_b32 s33, s26, 12
s_add_u32 s33, s33, {SX}
v_add_u32 v10, s33, v2
s_lshl_b32 s33, s32, 10
s_add_u32 s33, s33, {SX}
v_add_u32 v11, s33, v2
v_and_b32 v18, 3, v4
v_lshl_add_u32 v12, v16, 3, v18
s_lshl_b32 s33, s32, 2
v_add_u32 v12, s33, v12
v_lshlrev_b32 v18, 3, v3
v_sub_u32 v12, v12, v18
s_and_b32 s33, s27, 3
s_lshl_b32 s33, s33, 8
s_lshr_b32 s34, s27, 2
s_lshl_b32 s34, s34, 11
s_add_u32 s33, s33, s34
s_lshl_b32 s34, s32, 10
s_add_u32 s33, s33, s34
s_add_u32 s33, s33, 32768
v_lshlrev_b32 v13, 4, v4
v_lshl_add_u32 v13, v3, 2, v13
v_add_u32 v13, s33, v13
v_mov_b32 v16, {hex(OOB)}
v_cmp_eq_u32 vcc, 0, v0
v_cndmask_b32 v14, v16, 0, vcc
v_mov_b32 v15, 1
s_lshl_b32 s45, s27, 2
s_add_u32 s45, s45, {hex(OFF_FL + FL_P*4)}
s_lshl_b32 s50, s27, 1
s_add_u32 s50, s50, s32
s_lshl_b32 s50, s50, 10
s_mov_b32 s51, {NEGBIG}
s_waitcnt vmcnt(0)
s_barrier""")
    a("RT_loop:")
    a(f"""s_mul_i32 s46, s40, {XB}
s_add_u32 s46, s46, {hex(OFF_XN)}
s_add_u32 s47, s46, {14*1024}""")
    for kt in range(2):
        b = KEY + 14*kt; so = "s47" if kt else "s46"
        for p in range(3):
            a(f"buffer_load_dwordx4 v[{b+4*p}:{b+4*p+3}], v5, {WSR}, {so} offen offset:{p*1024}")
        a(f"buffer_load_dwordx2 v[{b+12}:{b+13}], v6, {WSR}, {so} offen")
    a(f"""v_add_u32 v7, s44, v2
s_xor_b32 s44, s44, {XB}
s_add_u32 s42, s44, s43
s_add_u32 s47, s40, {NT}
s_min_u32 s47, s47, 63
s_mul_i32 s41, s47, {XB}
s_add_u32 s41, s41, s43
s_add_u32 s41, s41, {hex(OFF_XP)}""")
    x_dma(a, "s41", "s42")
    gemm_segment(a, True, "v7")
    for t in range(2):
        for p in range(3):
            d0 = acc(2*p, t); d1 = acc(2*p+1, t)
            a(f"""v_cvt_pk_bf16_f32 v{d0}, v{d0}, v{d0+1}
v_cvt_pk_bf16_f32 v{d0+1}, v{d0+2}, v{d0+3}
v_cvt_pk_bf16_f32 v{d0+2}, v{d1}, v{d1+1}
v_cvt_pk_bf16_f32 v{d0+3}, v{d1+2}, v{d1+3}""")
        d0 = acc(6, t)
        a(f"v_cvt_pk_bf16_f32 v{d0}, v{d0}, v{d0+1}\nv_cvt_pk_bf16_f32 v{d0+1}, v{d0+2}, v{d0+3}")
    a("s_waitcnt vmcnt(7)")
    def smf(kt, t, p, keybase):
        d = Sa(kt, t); c = "0" if p == 0 else f"v[{d}:{d+3}]"
        if p < 3: a(f"v_mfma_f32_16x16x32_bf16 v[{d}:{d+3}], v[{keybase+4*p}:{keybase+4*p+3}], v[{acc(2*p,t)}:{acc(2*p,t)+3}], {c}")
        else: a(f"v_mfma_f32_16x16x16_bf16 v[{d}:{d+3}], v[{keybase+12}:{keybase+13}], v[{acc(6,t)}:{acc(6,t)+1}], {c}")
    for p in range(4):
        for kt in range(2):
            for t in range(2): smf(kt, t, p, KEY + 14*kt)
    for kt in range(2):
        for t in range(2):
            a(f"ds_write_b128 v10, v[{Sa(kt,t)}:{Sa(kt,t)+3}] offset:{(kt*2+t)*1024}")
    a(f"""s_lshl_b32 s46, s40, 13
s_add_u32 s46, s46, {hex(OFF_MX)}
s_cmp_gt_u32 s26, 1
s_waitcnt lgkmcnt(0)
s_barrier
s_cbranch_scc1 RT_poll""")
    X = KEY
    for kt in range(2):
        tm = [X + 4*kt, KEY+8, KEY+12, KEY+16]
        for w in range(4): a(f"ds_read_b128 v[{tm[w]}:{tm[w]+3}], v11 offset:{w*4096 + kt*2048}")
        a("s_waitcnt lgkmcnt(0)")
        for h2 in range(2):
            o = 2*h2
            a(f"""v_pk_add_f32 v[{tm[0]+o}:{tm[0]+o+1}], v[{tm[0]+o}:{tm[0]+o+1}], v[{tm[1]+o}:{tm[1]+o+1}]
v_pk_add_f32 v[{tm[2]+o}:{tm[2]+o+1}], v[{tm[2]+o}:{tm[2]+o+1}], v[{tm[3]+o}:{tm[3]+o+1}]
v_pk_add_f32 v[{tm[0]+o}:{tm[0]+o+1}], v[{tm[0]+o}:{tm[0]+o+1}], v[{tm[2]+o}:{tm[2]+o+1}]""")
    a(f"v_mov_b32 v{KEY+8}, s51")
    for s in range(8):
        a(f"v_cmp_le_i32 vcc, {s}, v12\nv_cndmask_b32 v{X+s}, v{KEY+8}, v{X+s}, vcc")
    MKT = RING
    a(f"""RT_poll:
s_cmp_ge_u32 s40, 62
s_cbranch_scc1 RT_poll2
s_cmp_lg_u32 s26, 2
s_cbranch_scc1 RT_cb
s_mov_b32 s33, {hex(OFF_PROG)}
s_cmp_ge_u32 s40, 55
s_cbranch_scc1 RT_can
RT_prog:
buffer_load_dword v{MKT}, off, {WSR}, s33 sc1
s_waitcnt vmcnt(0)
v_cmp_lt_u32 vcc, s40, v{MKT}
s_cbranch_vccnz RT_cb
s_sleep {OPT.get('tsleep2', 40)}
s_branch RT_prog
RT_can:
buffer_load_dword v{MKT}, off, {WSR}, s46 offset:3584 sc1
s_waitcnt vmcnt(0)
v_cmp_eq_u32 vcc, -1, v{MKT}
s_cbranch_vccz RT_cb
s_sleep {OPT.get('tsleep', 3)}
s_branch RT_can
RT_cb:
s_barrier
RT_poll2:
buffer_load_dwordx4 v[{MKT}:{MKT+3}], v8, {WSR}, s46 offen sc1
buffer_load_dwordx4 v[{MKT+4}:{MKT+7}], v8, {WSR}, s46 offen offset:512 sc1
buffer_load_dwordx4 v[{MKT+8}:{MKT+11}], v8, {WSR}, s46 offen offset:1024 sc1
buffer_load_dwordx2 v[{MKT+12}:{MKT+13}], v9, {WSR}, s46 offen sc1
s_waitcnt vmcnt(0)
v_max3_u32 v{MKT+14}, v{MKT}, v{MKT+1}, v{MKT+2}
v_max3_u32 v{MKT+15}, v{MKT+3}, v{MKT+4}, v{MKT+5}
v_max3_u32 v{MKT+14}, v{MKT+6}, v{MKT+7}, v{MKT+14}
v_max3_u32 v{MKT+15}, v{MKT+8}, v{MKT+9}, v{MKT+15}
v_max3_u32 v{MKT+14}, v{MKT+10}, v{MKT+11}, v{MKT+14}
v_max3_u32 v{MKT+15}, v{MKT+12}, v{MKT+13}, v{MKT+15}
v_max_u32 v{MKT+14}, v{MKT+14}, v{MKT+15}
v_cmp_eq_u32 vcc, -1, v{MKT+14}
s_cbranch_vccz RT_got
s_sleep 1
s_branch RT_poll2
RT_got:""")
    for p in range(4):
        for t in range(2): smf(2, t, p, MKT)
    a(f"""v_subrev_u32 v{MKT+14}, {SX}, v10
v_lshrrev_b32 v{MKT+14}, 1, v{MKT+14}
v_add_u32 v{MKT+14}, {SX2}, v{MKT+14}""")
    for t in range(2):
        a(f"ds_write_b64 v{MKT+14}, v[{Sa(2,t)}:{Sa(2,t)+1}] offset:{t*512}")
    a(f"""s_mul_i32 s47, s40, 40960
s_add_u32 s47, s47, {hex(OFF_PT)}
s_add_u32 s48, s47, s50
s_cmp_gt_u32 s26, 1
s_waitcnt lgkmcnt(0)
s_barrier
s_cbranch_scc1 RT_join
v_subrev_u32 v{MKT+14}, {SX}, v11
v_lshrrev_b32 v{MKT+14}, 1, v{MKT+14}
v_add_u32 v{MKT+14}, {SX2}, v{MKT+14}""")
    Y = KEY + 8; R = KEY + 16; TT = KEY + 17
    for w in range(4): a(f"ds_read_b64 v[{Y+2*w}:{Y+2*w+1}], v{MKT+14} offset:{w*2048}")
    a(f"""v_max3_f32 v{R}, v{X}, v{X+1}, v{X+2}
v_max3_f32 v{TT}, v{X+3}, v{X+4}, v{X+5}
v_max3_f32 v{R}, v{X+6}, v{X+7}, v{R}
s_waitcnt lgkmcnt(0)
v_pk_add_f32 v[{Y}:{Y+1}], v[{Y}:{Y+1}], v[{Y+2}:{Y+3}]
v_pk_add_f32 v[{Y+4}:{Y+5}], v[{Y+4}:{Y+5}], v[{Y+6}:{Y+7}]
v_pk_add_f32 v[{Y}:{Y+1}], v[{Y}:{Y+1}], v[{Y+4}:{Y+5}]
v_max3_f32 v{R}, v{R}, v{TT}, v{Y}
v_max_f32 v{R}, v{R}, v{Y+1}""")
    xrow_reduce(a, "v_max_f32", R, TT)
    for i in range(10): a(f"v_sub_f32 v{X+i}, v{X+i}, v{R}")
    for i in range(10): a(f"v_exp_f32 v{X+i}, v{X+i}")
    a(f"""v_pk_add_f32 v[{Y+2}:{Y+3}], v[{X}:{X+1}], v[{X+2}:{X+3}]
v_pk_add_f32 v[{Y+4}:{Y+5}], v[{X+4}:{X+5}], v[{X+6}:{X+7}]
v_pk_add_f32 v[{Y+2}:{Y+3}], v[{Y+2}:{Y+3}], v[{Y}:{Y+1}]
v_pk_add_f32 v[{Y+2}:{Y+3}], v[{Y+2}:{Y+3}], v[{Y+4}:{Y+5}]
v_add_f32 v{R}, v{Y+2}, v{Y+3}""")
    xrow_reduce(a, "v_add_f32", R, TT)
    a(f"v_rcp_f32 v{R}, v{R}")
    for i in range(5): a(f"v_pk_mul_f32 v[{X+2*i}:{X+2*i+1}], v[{X+2*i}:{X+2*i+1}], v[{R}:{R+1}] op_sel_hi:[1,0]")
    for i in range(5): a(f"v_cvt_pk_bf16_f32 v{X+i}, v{X+2*i}, v{X+2*i+1}")
    a(f"""buffer_store_dwordx4 v[{X}:{X+3}], v2, {WSR}, s48 offen sc1
buffer_store_dword v{X+4}, v13, {WSR}, s47 offen sc1
s_waitcnt vmcnt(0)
RT_join:
s_lshl_b32 s46, s40, 8
s_add_u32 s46, s46, s45
s_barrier
buffer_store_dword v15, v14, {WSR}, s46 offen sc1
s_add_u32 s40, s40, {NT}
s_cmp_lt_u32 s40, 64
s_cbranch_scc1 RT_loop
s_endpgm""")

def flag_wait(a, tag, smask, voff, vdst, soff, sleep=4, sleep2=0, bar=True):
    a(f"""s_cmp_lg_u32 s26, 0
s_cbranch_scc1 {tag}_b
{tag}:
buffer_load_dword v{vdst}, v{voff}, {WSR}, {soff} offen sc1
s_waitcnt vmcnt(0)
v_cmp_eq_u32 vcc, 0, v{vdst}
s_and_b64 vcc, vcc, {smask}
s_cbranch_vccz {tag}_b
s_sleep {sleep}
s_cmp_lt_u32 s40, 60
s_cbranch_scc0 {tag}
s_sleep {sleep2}
s_branch {tag}
{tag}_b:""")
    if bar: a("s_barrier")

def role_F(a):
    ZF = 16; UF = 144; PF = 176
    a("R_F:")
    a('s_cmp_eq_u32 s27, 63\ns_cbranch_scc1 M_end')
    init_wait(a, "RF_iw")
    srd_load(a, "out", AUX); srd_fin(a, "out", AUX)
    a(f"""s_mul_i32 s28, s27, 37
s_lshr_b32 s28, s28, 8
s_mul_i32 s29, s28, 7
s_sub_u32 s29, s27, s29
s_lshr_b32 s30, s26, 1
s_lshl_b32 s31, s29, 1
s_add_u32 s30, s30, s31
s_and_b32 s32, s26, 1
v_lshlrev_b32 v5, 2, v1
v_lshrrev_b32 v10, 2, v1
v_lshlrev_b32 v10, 10, v10
v_and_b32 v11, 3, v1
v_lshl_add_u32 v10, v11, 2, v10
v_add_u32 v10, {OFF_ZF - OFF_FL}, v10
v_lshlrev_b32 v6, 2, v4
v_lshrrev_b32 v7, 2, v4
v_and_b32 v8, 3, v4
v_lshl_add_u32 v7, v7, 3, v8
s_lshl_b32 s33, s32, 2
v_add_u32 v7, s33, v7
v_mul_u32_u24 v7, 896, v7
v_lshl_add_u32 v7, v3, 4, v7
s_lshl_b32 s33, s30, 6
v_add_u32 v7, s33, v7
s_mov_b32 s50, 0x0000ffff
s_mov_b32 s51, 0x00010000
s_mov_b32 s52, 0xffff0000
s_mov_b32 s53, 0
s_lshl_b32 s56, 3, s31
s_mov_b32 s57, 0
s_mov_b32 s40, s28
s_mov_b32 s54, 0xffff0000
s_waitcnt lgkmcnt(0)""")
    a("RF_loop:")
    a(f"s_lshl_b32 s41, s40, 8\ns_add_u32 s41, s41, {hex(OFF_FL)}")
    a(f"""s_mul_i32 s33, s40, 240
v_subrev_u32 v11, s33, v10
v_cmp_gt_u32 vcc, 16, v1
v_cndmask_b32 v11, v5, v11, vcc""")
    flag_wait(a, "RF_w1", "s[50:51]", 11, 9, "s41", 16, 30)
    a(f"""s_mul_i32 s42, s40, {16*28}
s_lshl_b32 s33, s30, 1
s_add_u32 s42, s42, s33
s_lshl_b32 s42, s42, 10
s_add_u32 s42, s42, {hex(OFF_Z)}""")
    for h in range(16):
        for c in range(2):
            b = ZF + (h*2+c)*4
            a(f"buffer_load_dwordx4 v[{b}:{b+3}], v2, {WSR}, s42 offen offset:{c*1024} sc1")
        if h < 15: a(f"s_add_u32 s42, s42, {28*1024}")
    a(f"""s_lshl_b32 s43, s40, 1
s_add_u32 s43, s43, s32
s_lshl_b32 s44, s43, 6
s_add_u32 s44, s44, {hex(OFF_OMG)}
s_mul_i32 s43, s43, 14
s_add_u32 s43, s43, s30
s_lshl_b32 s43, s43, 10
s_add_u32 s43, s43, {hex(OFF_GA)}
buffer_load_dwordx4 v[{PF}:{PF+3}], v2, {WSR}, s43 offen sc1
buffer_load_dword v{PF+4}, v6, {WSR}, s44 offen sc1""")
    a(f"""s_lshr_b32 s48, s40, 2
s_lshl_b32 s48, s48, 6
s_cmp_ge_u32 s40, 60
s_cselect_b32 s48, 1024, s48
s_cselect_b32 s53, s56, 0xffff
s_add_u32 s48, s48, {hex(OFF_UF - 128)}
s_sub_u32 s48, s48, s41
v_add_u32 v11, s48, v5
v_cmp_gt_u32 vcc, 32, v1
v_cndmask_b32 v11, v11, v5, vcc""")
    flag_wait(a, "RF_w2", "s[52:53]", 11, 9, "s41", 1, int(OPT.get("fsleep", 30)))
    a(f"""s_mul_i32 s45, s40, 40960
s_lshl_b32 s33, s32, 10
s_add_u32 s45, s45, s33
s_add_u32 s45, s45, {hex(OFF_PT)}
s_mul_i32 s46, s40, {4*28}
s_lshl_b32 s33, s30, 1
s_add_u32 s46, s46, s33
s_lshl_b32 s46, s46, 10
s_add_u32 s46, s46, {hex(OFF_U)}""")
    for h in range(20):
        d = 4*h
        a(f"buffer_load_dwordx4 a[{d}:{d+3}], v2, {WSR}, s45 offen offset:{(h & 1)*2048} sc1")
        if h & 1: a("s_add_u32 s45, s45, 4096")
    for hg in range(4):
        for c in range(2):
            b = UF + (hg*2+c)*4
            a(f"buffer_load_dwordx4 v[{b}:{b+3}], v2, {WSR}, s46 offen offset:{c*1024} sc1")
        if hg < 3: a(f"s_add_u32 s46, s46, {28*1024}")
    A0 = PF + 8
    for h in range(20):
        if h < 16: a(f"s_waitcnt vmcnt({27-h})")
        elif h == 16: a("s_waitcnt vmcnt(0)")
        for c in range(2):
            b = ZF + (h*2+c)*4 if h < 16 else UF + ((h-16)*2+c)*4
            d = A0 + 4*c
            a(f"v_mfma_f32_16x16x32_bf16 v[{d}:{d+3}], v[{b}:{b+3}], a[{4*h}:{4*h+3}], {'0' if h == 0 else f'v[{d}:{d+3}]'}")
    T0 = A0 + 8
    a(f"s_mul_i32 s47, s40, {32*896}")
    for i in range(4):
        a(f"""v_cvt_pk_bf16_f32 v{T0}, v{A0+2*i}, v{A0+2*i+1}
v_lshlrev_b32 v{T0+2}, 16, v{T0}
v_and_b32 v{T0+3}, s54, v{T0}
v_mul_f32 v{T0+2}, v{T0+2}, v{PF+4}
v_mul_f32 v{T0+3}, v{T0+3}, v{PF+4}
v_cvt_pk_bf16_f32 v{T0}, v{T0+2}, v{T0+3}
v_lshlrev_b32 v{T0+2}, 16, v{T0}
v_and_b32 v{T0+3}, s54, v{T0}
v_lshlrev_b32 v{T0+4}, 16, v{PF+i}
v_and_b32 v{T0+5}, s54, v{PF+i}
v_add_f32 v{T0+2}, v{T0+2}, v{T0+4}
v_add_f32 v{T0+3}, v{T0+3}, v{T0+5}
v_cvt_pk_bf16_f32 v{PF+i}, v{T0+2}, v{T0+3}""")
    a(f"""buffer_store_dwordx4 v[{PF}:{PF+3}], v7, {AUXR}, s47 offen {OPT.get("ost", "")}
s_add_u32 s40, s40, 9
s_cmp_lt_u32 s40, 64
s_cbranch_scc1 RF_loop
s_endpgm""")

def role_L(a):
    from k1 import VM
    DB = 16; DBR = f"s[{DB}:{DB+3}]"
    ACCL = 16; PK = 32; VF = 40; KVA = 48; PQ = 64; TM = 96; G = 120; CI = 124
    xf = lambda t, ks: f"a[{(t*14+ks)*4}:{(t*14+ks)*4+3}]"
    def wb(j, blk):
        b = 4*blk
        return f"a[{112+b}:{115+b}]" if j % 2 == 0 else f"v[{128+b}:{131+b}]"
    al = lambda tt, t: ACCL + (tt*2+t)*4
    a("R_L:")
    late_start(a, "RL_late", int(OPT.get("lstep", 1)))
    wait_rel(a, "RL_img", RI, 5)
    srd_load(a, "gw", AUX); srd_fin(a, "gw", AUX)
    a(f"""s_mul_i32 s40, s27, {XB}
s_add_u32 s40, s40, {hex(OFF_XN)}
s_mul_i32 s41, s26, {12*28*1024}
s_add_u32 s41, s41, {hex(OFF_WL)}
v_lshlrev_b32 v5, 4, v3
v_lshlrev_b32 v6, 2, v1
v_cmp_eq_u32 vcc, 12, v4
v_cndmask_b32 v{CI}, 0, 1.0, vcc
v_cndmask_b32 v{CI+1}, 0, 1.0, vcc
v_cndmask_b32 v{CI+2}, 0, 1.0, vcc
v_cndmask_b32 v{CI+3}, 0, 1.0, vcc
v_cmp_gt_u32 vcc, 3, v3
v_cndmask_b32 v7, 0, -1, vcc
s_mov_b32 s50, {f32(LOG2E)}
s_mov_b32 s51, {f32(LOG2E)}
s_mov_b32 s52, {f32(1e-6)}
s_mov_b32 s53, {f32(1e-6)}
s_mov_b32 s54, 0xffff0000
s_lshl_b32 s42, s26, 14
s_add_u32 s42, s42, {hex(OFF_KV)}
s_waitcnt lgkmcnt(0)""")
    vm = VM(a)
    for i in range(28):
        vm.op(f"buffer_load_dwordx4 a[{4*i}:{4*i+3}], v2, {WSR}, s40 offen offset:{(i%4)*1024}", "x" if i == 27 else None)
        if i % 4 == 3: a("s_add_u32 s40, s40, 4096")
    for ks in range(14):
        vm.op(f"buffer_load_dwordx4 v[{PQ+4*ks}:{PQ+4*ks+3}], v5, {AUXR}, 0 offen offset:{64*ks}", "gw" if ks == 13 else None)
    def wload(j, blk):
        vm.op(f"buffer_load_dwordx4 {wb(j, blk)}, v2, {WSR}, s41 offen offset:{(blk%4)*1024}", ("w", j, blk))
        if blk % 4 == 3: a("s_add_u32 s41, s41, 4096")
    for blk in range(28): wload(0, blk)
    for blk in range(28): wload(1, blk)
    vm.wait("gw")
    a(f"v_mov_b32 v{ACCL}, 0\nv_mov_b32 v{ACCL+4}, 0\ns_mov_b32 s55, 0x3f803f80")
    GT = 32
    for ks in range(14):
        for i in range(4):
            g = PQ + 4*ks + i
            a(f"v_lshlrev_b32 v{GT}, 16, v{g}\nv_and_b32 v{GT+1}, s54, v{g}")
            for t2 in range(2):
                x = GT + 2 + 4*t2
                a(f"""v_accvgpr_read_b32 v{x+2}, a{(t2*14+ks)*4+i}
v_lshlrev_b32 v{x}, 16, v{x+2}
v_and_b32 v{x+1}, s54, v{x+2}
v_pk_mul_f32 v[{x}:{x+1}], v[{x}:{x+1}], v[{GT}:{GT+1}]
v_cvt_pk_bf16_f32 v{x+2}, v{x}, v{x+1}
v_dot2_f32_bf16 v{ACCL+4*t2}, v{x+2}, s55, v{ACCL+4*t2}""")
    xrow_reduce(a, "v_add_f32", ACCL, GT); xrow_reduce(a, "v_add_f32", ACCL+4, GT)
    a(f"""v_cvt_pk_bf16_f32 v{TM}, v{ACCL}, v{ACCL+4}
v_lshlrev_b32 v{G}, 16, v{TM}
v_and_b32 v{G+1}, s54, v{TM}
v_pk_mul_f32 v[{G}:{G+1}], v[{G}:{G+1}], s[50:51] neg_lo:[1,0] neg_hi:[1,0]
v_exp_f32 v{G}, v{G}
v_exp_f32 v{G+1}, v{G+1}
v_pk_add_f32 v[{G}:{G+1}], v[{G}:{G+1}], 1.0 op_sel_hi:[1,0]
v_rcp_f32 v{G}, v{G}
v_rcp_f32 v{G+1}, v{G+1}
v_cvt_pk_bf16_f32 v{TM}, v{G}, v{G+1}
v_lshlrev_b32 v{G}, 16, v{TM}
v_and_b32 v{G+1}, s54, v{TM}
v_sub_f32 v{TM}, 1.0, v{G}
v_sub_f32 v{TM+1}, 1.0, v{G+1}
v_cvt_pk_bf16_f32 v{TM}, v{TM}, v{TM+1}
v_lshlrev_b32 v{G+2}, 16, v{TM}
v_and_b32 v{G+3}, s54, v{TM}
v_mov_b32 v{TM}, {hex(OOB)}
v_cmp_gt_u32 vcc, 16, v0
v_cndmask_b32 v8, v{TM}, v6, vcc
v_cmp_eq_u32 vcc, 0, v0
v_cndmask_b32 v9, v{TM}, 0, vcc
s_lshl_b32 s43, s27, 7
s_add_u32 s43, s43, {hex(OFF_OMG)}""")
    vm.op(f"buffer_store_dword v{G+2}, v8, {WSR}, s43 offen sc1")
    vm.op(f"buffer_store_dword v{G+3}, v8, {WSR}, s43 offen offset:64 sc1")
    def phi(dst, x0):
        a(f"""v_cvt_pk_bf16_f32 v{TM}, v{x0}, v{x0+1}
v_lshlrev_b32 v{TM+2}, 16, v{TM}
v_and_b32 v{TM+3}, s54, v{TM}
v_pk_mul_f32 v[{TM+4}:{TM+5}], v[{TM+2}:{TM+3}], s[50:51]
v_max_f32 v{TM+2}, 0, v{TM+2}
v_min_f32 v{TM+4}, 0, v{TM+4}
v_min_f32 v{TM+5}, 0, v{TM+5}
v_exp_f32 v{TM+4}, v{TM+4}
v_exp_f32 v{TM+5}, v{TM+5}
v_max_f32 v{TM+3}, 0, v{TM+3}
v_pk_add_f32 v[{TM+2}:{TM+3}], v[{TM+2}:{TM+3}], v[{TM+4}:{TM+5}]
v_cvt_pk_bf16_f32 v{TM}, v{TM+2}, v{TM+3}
v_lshlrev_b32 v{TM+2}, 16, v{TM}
v_and_b32 v{TM+3}, s54, v{TM}
v_pk_add_f32 v[{TM+2}:{TM+3}], v[{TM+2}:{TM+3}], s[52:53]
v_cvt_pk_bf16_f32 v{dst}, v{TM+2}, v{TM+3}""")
    for j in range(12):
        hl, part = divmod(j, 3)
        for blk in range(28):
            tt, ks = divmod(blk, 14)
            vm.wait(("w", j, blk))
            for t in range(2):
                d = al(tt, t)
                c = f"v[{d}:{d+3}]" if ks else (f"v[{CI}:{CI+3}]" if (part == 2 and tt == 1) else "0")
                A, B = (wb(j, blk), xf(t, ks)) if part == 0 else (xf(t, ks), wb(j, blk))
                a(f"v_mfma_f32_16x16x32_bf16 v[{d}:{d+3}], {A}, {B}, {c}")
            if j + 2 < 12: wload(j+2, blk)
        for tt in range(2):
            for t in range(2):
                for k in range(2):
                    src = al(tt, t) + 2*k
                    if part == 0: phi(PQ + (hl*2+t)*4 + 2*tt + k, src)
                    elif part == 1: phi(PK + 4*tt + 2*t + k, src)
                    else: a(f"v_cvt_pk_bf16_f32 v{VF + 4*tt + 2*t + k}, v{src}, v{src+1}")
        if part == 2:
            for td in range(2):
                for te in range(2):
                    d = KVA + (td*2+te)*4
                    a(f"v_mfma_f32_16x16x32_bf16 v[{d}:{d+3}], v[{PK+4*td}:{PK+4*td+3}], v[{VF+4*te}:{VF+4*te+3}], 0")
            for i in range(16):
                vm.op(f"buffer_atomic_add_f32 v{KVA+i}, v6, {WSR}, s42 offen offset:{i*256}")
            a("s_add_u32 s42, s42, 4096")
    wo = lambda slot, h: (f"a[{128+64*slot+4*h}:{131+64*slot+4*h}]" if slot < 2 else f"v[{192+4*h}:{195+4*h}]")
    a(f"""s_mul_i32 s41, s26, {7*16*1024}
s_add_u32 s41, s41, {hex(OFF_WO)}
s_waitcnt vmcnt(0)
s_barrier""")
    arrive(a, "RL_arr", CL, 64, RL_, TM)
    vm = VM(a)
    def woload(c):
        for h in range(16):
            vm.op(f"buffer_load_dwordx4 {wo(c % 3, h)}, v2, {WSR}, s41 offen offset:{(h%4)*1024}", ("wo", c, h))
            if h % 4 == 3: a("s_add_u32 s41, s41, 4096")
    for c in range(3): woload(c)
    wait_rel(a, "RL_w", RL_, TM, 8)
    a("""s_sub_u32 s42, s42, 16384""")
    KR = 128
    for hl in range(4):
        for i in range(16):
            vm.op(f"buffer_load_dword v{KR+16*hl+i}, v6, {WSR}, s42 offen offset:{i*256} sc1", ("kv", hl) if i == 15 else None)
        a("s_add_u32 s42, s42, 4096")
    a(f"s_lshl_b32 s33, s26, 13\nv_add_u32 v10, s33, v2")
    KF = 32; ZF = 40; N0 = 16
    for hl in range(4):
        vm.wait(("kv", hl))
        k = lambda td, te, r: KR + 16*hl + (td*2+te)*4 + r
        for te in range(2):
            for td in range(2):
                for e in range(2):
                    a(f"v_cvt_pk_bf16_f32 v{KF+4*te+2*td+e}, v{k(td,te,2*e)}, v{k(td,te,2*e+1)}")
            a(f"v_and_b32 v{KF+4*te+2}, v7, v{KF+4*te+2}\nv_and_b32 v{KF+4*te+3}, v7, v{KF+4*te+3}")
        for i in range(4): a(f"v_mov_b32_dpp v{ZF+i}, v{KF+4+i} row_newbcast:12 {DPM}")
        for t in range(2):
            pq = f"v[{PQ+(hl*2+t)*4}:{PQ+(hl*2+t)*4+3}]"
            a(f"""v_mfma_f32_16x16x32_bf16 v[{N0+8}:{N0+11}], v[{ZF}:{ZF+3}], {pq}, 0
v_mfma_f32_16x16x32_bf16 v[{N0}:{N0+3}], v[{KF}:{KF+3}], {pq}, 0
v_mfma_f32_16x16x32_bf16 v[{N0+4}:{N0+7}], v[{KF+4}:{KF+7}], {pq}, 0
v_cvt_pk_bf16_f32 v{TM}, v{N0+8}, v{N0+8}
v_lshlrev_b32 v{TM}, 16, v{TM}
v_add_f32 v{TM}, s52, v{TM}
v_cvt_pk_bf16_f32 v{TM}, v{TM}, v{TM}
v_lshlrev_b32 v{TM}, 16, v{TM}
v_rcp_f32 v{TM}, v{TM}""")
            for i in range(4):
                a(f"""v_cvt_pk_bf16_f32 v{TM+4}, v{N0+2*i}, v{N0+2*i+1}
v_lshlrev_b32 v{TM+2}, 16, v{TM+4}
v_and_b32 v{TM+3}, s54, v{TM+4}
v_pk_mul_f32 v[{TM+2}:{TM+3}], v[{TM+2}:{TM+3}], v[{TM}:{TM+1}] op_sel_hi:[1,0]
v_cvt_pk_bf16_f32 v{44+i}, v{TM+2}, v{TM+3}""")
            a(f"ds_write_b128 v10, v[44:47] offset:{(hl*2+t)*1024}")
    a("s_waitcnt lgkmcnt(0)\ns_barrier")
    for i in range(32):
        a(f"ds_read_b128 a[{4*i}:{4*i+3}], v2 offset:{i*1024}")
        if i % 8 == 7: a("s_waitcnt lgkmcnt(0)")
    a(f"s_mul_i32 s44, s26, 7\ns_mul_i32 s45, s27, {28*1024}\ns_add_u32 s45, s45, {hex(OFF_GA)}")
    for c in range(7):
        for h in range(16):
            vm.wait(("wo", c, h))
            for t in range(2):
                d = ACCL + 4*t
                a(f"v_mfma_f32_16x16x32_bf16 v[{d}:{d+3}], {wo(c % 3, h)}, a[{(h*2+t)*4}:{(h*2+t)*4+3}], {'0' if h == 0 else f'v[{d}:{d+3}]'}")
        if c + 3 < 7: woload(c+3)
        a(f"""s_add_u32 s33, s44, {c}
s_lshr_b32 s46, s33, 1
s_lshl_b32 s46, s46, 10
s_and_b32 s33, s33, 1
s_lshl_b32 s33, s33, 3
s_add_u32 s46, s46, s33
s_add_u32 s46, s46, s45
s_add_u32 s47, s46, {14*1024}""")
        for t in range(2):
            o = 32 + 2*t + 4*(c & 1)
            for i in range(2):
                a(f"""v_cvt_pk_bf16_f32 v{TM+4}, v{ACCL+4*t+2*i}, v{ACCL+4*t+2*i+1}
v_lshlrev_b32 v{TM+2}, 16, v{TM+4}
v_and_b32 v{TM+3}, s54, v{TM+4}
v_mul_f32 v{TM+2}, v{TM+2}, v{G+t}
v_mul_f32 v{TM+3}, v{TM+3}, v{G+t}
v_cvt_pk_bf16_f32 v{o+i}, v{TM+2}, v{TM+3}""")
            vm.op(f"buffer_store_dwordx2 v[{o}:{o+1}], v2, {WSR}, s{46+t} offen sc1")
    a(f"""s_lshl_b32 s46, s27, 8
s_add_u32 s46, s46, {hex(OFF_FL + FL_G*4)}
v_mov_b32 v{TM}, 1
s_waitcnt vmcnt(0)
s_barrier
buffer_store_dword v{TM}, v9, {WSR}, s46 offen sc1
s_endpgm""")
```
